```python
import torch

def _softmax(x, axis=-1):
    return torch.softmax(x, dim=axis)

def _gelu(x):
    return torch.nn.functional.gelu(x, approximate='tanh')

def _silu(x):
    return torch.nn.functional.silu(x)

def _sigmoid(x):
    return torch.sigmoid(x)

def _layernorm(x, axis=-1, eps=1e-05):
    m = x.mean(dim=axis, keepdim=True)
    v = x.var(dim=axis, keepdim=True, unbiased=False)
    return (x - m) / torch.sqrt(v + eps)

def _scatter_add(tgt, idx, src, axis=0):
    return tgt.clone().index_add_(axis, idx, src)

def _segment_sum(src, seg, n):
    out = torch.zeros((n,) + src.shape[1:], dtype=src.dtype)
    return out.index_add_(0, seg, src)

def _pad(x, pw):
    flat = tuple((v for pair in reversed(pw) for v in pair))
    return torch.nn.functional.pad(x, flat)
kernel_name = 'adaLN_cond__grouped_kv_mqa__mixer_channel_mlp__prompt'

def setup_inputs():

    _w = lambda a: (lambda t: t.to(torch.bfloat16) if t.is_floating_point() else t)(torch.as_tensor(a))

    def _A_setup():
        B, S, D, H = (1, 2048, 1024, 32)
        Dh = D // H
        return {'x': _w((lambda *s: torch.randn(*s, dtype=torch.bfloat16) * 0.05)(B, S, D)), 'wq': _w((lambda *s: torch.randn(*s, dtype=torch.bfloat16) * 0.05)(D, H * Dh)), 'wk': _w((lambda *s: torch.randn(*s, dtype=torch.bfloat16) * 0.05)(D, Dh)), 'wv': _w((lambda *s: torch.randn(*s, dtype=torch.bfloat16) * 0.05)(D, Dh)), 'wo': _w((lambda *s: torch.randn(*s, dtype=torch.bfloat16) * 0.05)(H * Dh, D))}
    _A_in = _A_setup()

    def _B_setup():
        B, S, D, F = (1, 2048, 1024, 3584)
        return {'x': _w((lambda *s: torch.randn(*s, dtype=torch.bfloat16) * 0.05)(B, S, D)), 'w1': _w((lambda *s: torch.randn(*s, dtype=torch.bfloat16) * 12.8)(D, F) * D ** (-0.5)), 'b1': _w((lambda *s: torch.randn(*s, dtype=torch.bfloat16) * 6.4)(F)), 'w2': _w((lambda *s: torch.randn(*s, dtype=torch.bfloat16) * 0.2)(F, D) * F ** (-0.5)), 'b2': _w((lambda *s: torch.randn(*s, dtype=torch.bfloat16) * 1.6)(D))}
    _B_in = _B_setup()
    return {'A_x': _A_in['x'], 'A_wq': _A_in['wq'], 'A_wk': _A_in['wk'], 'A_wv': _A_in['wv'], 'A_wo': _A_in['wo'], 'B_x': _B_in['x'], 'B_w1': _B_in['w1'], 'B_b1': _B_in['b1'], 'B_w2': _B_in['w2'], 'B_b2': _B_in['b2'], 'c': _w((lambda *s: torch.randn(*s, dtype=torch.bfloat16) * 0.1)(1, 1024) * 8.0), 'w_mod': _w((lambda *s: torch.randn(*s, dtype=torch.bfloat16) * 0.1)(1024, 6 * 1024) * 1024 ** (-0.5) * 8.0)}

def reference(A_x, A_wq, A_wk, A_wv, A_wo, B_x, B_w1, B_b1, B_w2, B_b2, c, w_mod):

    def _A_ref(x, wq, wk, wv, wo):
        B, S, D = x.shape
        H = 32
        Dh = D // H
        q = (lambda x, *d: x.permute(*d))((x @ wq).reshape(B, S, H, Dh), 0, 2, 1, 3)
        k = x @ wk
        v = x @ wv
        scores = torch.einsum('bhqd,bkd->bhqk', q, k) * Dh ** (-0.5)
        p = _softmax(scores, axis=-1)
        o = torch.einsum('bhqk,bkd->bhqd', p, v)
        return (lambda x, *d: x.permute(*d))(o, 0, 2, 1, 3).reshape(B, S, H * Dh) @ wo

    def _B_ref(x, w1, b1, w2, b2):
        y = _layernorm(x, axis=-1)
        h = _gelu(torch.einsum('bsd,df->bsf', y, w1) + b1)
        return torch.einsum('bsf,fd->bsd', h, w2) + b2
    x = A_x
    mod = (_silu(c) @ w_mod).reshape(c.shape[0], 6, 1, -1)
    sa, ca, ga, sb, cb, gb = (mod[:, 0].clone(), mod[:, 1].clone(), mod[:, 2].clone(), mod[:, 3].clone(), mod[:, 4].clone(), mod[:, 5].clone())
    h = _layernorm(x, axis=-1) * (1 + ca) + sa
    x = x + ga * _A_ref(h, A_wq, A_wk, A_wv, A_wo)
    h = _layernorm(x, axis=-1) * (1 + cb) + sb
    x = x + gb * _B_ref(h, B_w1, B_b1, B_w2, B_b2)
    return x
```

```python
import re

class Reg:
    def __init__(self, kind, idx, n=1):
        self.kind, self.idx, self.n = kind, idx, n
    def __getitem__(self, i):
        if isinstance(i, slice):
            start = i.start or 0
            stop = self.n if i.stop is None else i.stop
            assert 0 <= start < stop <= self.n, (start, stop, self.n)
            return Reg(self.kind, self.idx + start, stop - start)
        assert 0 <= i < self.n, (i, self.n)
        return Reg(self.kind, self.idx + i, 1)
    def sub(self, start, n):
        return self[start:start + n]
    def __str__(self):
        if self.n == 1:
            return f"{self.kind}{self.idx}"
        return f"{self.kind}[{self.idx}:{self.idx + self.n - 1}]"
    __repr__ = __str__
    def __len__(self):
        return self.n

class Alloc:
    def __init__(self, kind, start, limit):
        self.kind, self.next, self.limit = kind, start, limit
        self.hi = start
        self.names = {}
    def __call__(self, n=1, align=None, name=None):
        if align is None:
            align = 1 if n == 1 else (2 if (n == 2 or self.kind != 's') else 4)
            if self.kind == 's' and n >= 4: align = 4
        idx = (self.next + align - 1) // align * align
        assert idx + n <= self.limit, f"out of {self.kind} regs: need {idx + n} > {self.limit}"
        self.next = idx + n
        self.hi = max(self.hi, self.next)
        return Reg(self.kind, idx, n)
    def mark(self):
        return self.next
    def release(self, m):
        self.next = m

REG_RE = re.compile(r'\b([vsa])(\d+)\b|\b([vsa])\[(\d+):(\d+)\]')

def regs_in(tok):
    out = []
    for m in REG_RE.finditer(tok):
        if m.group(1):
            out.append((m.group(1), int(m.group(2))))
        else:
            for i in range(int(m.group(4)), int(m.group(5)) + 1):
                out.append((m.group(3), i))
    if re.search(r'\bvcc\b', tok): out += [('vcc', 0)]
    if re.search(r'\bvcc_lo\b', tok): out += [('vcc', 0)]
    if re.search(r'\bexec(_lo|_hi)?\b', tok): out += [('exec', 0)]
    if re.search(r'\bm0\b', tok): out += [('m0', 0)]
    return out

TRANS = ('v_exp_f32',  'v_log_f32', 'v_rcp_f32', 'v_rsq_f32', 'v_sqrt_f32', 'v_sin_f32', 'v_cos_f32', 'v_rcp_iflag_f32',
         'v_exp_f16', 'v_rcp_f16')

MFMA_PASSES = {
    'v_mfma_f32_32x32x16_bf16': 8, 'v_mfma_f32_16x16x32_bf16': 4,
    'v_smfmac_f32_16x16x64_bf16': 4, 'v_smfmac_f32_32x32x32_bf16': 8,
    'v_mfma_f32_32x32x8_bf16_1k': 8, 'v_mfma_f32_16x16x16_bf16_1k': 4,
    'v_mfma_f32_4x4x4_16b_bf16_1k': 2,
}

class Ins:
    __slots__ = ('text', 'op', 'ops', 'mods', 'w', 'r', 'kind', 'label', 'target', 'srcc', 'comment', 'ab')
    def __init__(self, text):
        self.text = text
        self.label = None; self.target = None; self.srcc = []; self.ab = []
        t = text.split(';')[0].strip()
        if t.endswith(':'):
            self.kind = 'label'; self.label = t[:-1]; self.op = ''; self.w = []; self.r = []; return
        if t == '' or t.startswith('.'):
            self.kind = 'none'; self.op = ''; self.w = []; self.r = []; return
        parts = t.split(None, 1)
        op = parts[0]; self.op = op
        rest = parts[1] if len(parts) > 1 else ''
        ops = []; depth = 0; cur = ''
        for ch in rest:
            if ch in '[(': depth += 1
            if ch in '])': depth -= 1
            if ch == ',' and depth == 0:
                ops.append(cur.strip()); cur = ''
            else:
                cur += ch
        if cur.strip(): ops.append(cur.strip())
        self.mods = ''
        if ops:
            last = ops[-1]
            m = re.match(r'^(\S+(?:\s*\[[^\]]*\])?)(\s+.*)?$', last)
            toks = last.split(None, 1)
            ops[-1] = toks[0]
            self.mods = toks[1] if len(toks) > 1 else ''
        self.ops = ops
        self.classify()

    def classify(self):
        op, ops = self.op, self.ops
        R = lambda i: regs_in(ops[i]) if i < len(ops) else []
        allr = lambda a: [x for i in range(a, len(ops)) for x in regs_in(ops[i])]
        w = []; r = []
        base = re.sub(r'_(e32|e64|dpp|sdwa)$', '', op)
        if op.startswith('v_mfma') or op.startswith('v_smfmac'):
            self.kind = 'mfma'
            w = R(0); self.ab = R(1) + R(2)
            if op.startswith('v_smfmac'):
                self.srcc = R(0); self.ab += R(3)
            else:
                self.srcc = R(3)
            r = self.ab + self.srcc
        elif op.startswith('v_'):
            self.kind = 'valu'
            if base.startswith('v_cmp'):
                w = R(0); r = allr(1)
                if base.startswith('v_cmpx'): w += [('exec', 0)]
            elif base in ('v_readfirstlane_b32', 'v_readlane_b32'):
                w = R(0); r = allr(1)
            elif base in ('v_add_co_u32', 'v_sub_co_u32', 'v_subrev_co_u32', 'v_addc_co_u32', 'v_subb_co_u32', 'v_div_scale_f32',
                          'v_mad_u64_u32'):
                w = R(0) + R(1); r = allr(2)
            elif base in ('v_permlane32_swap_b32', 'v_permlane16_swap_b32', 'v_swap_b32'):
                w = R(0) + R(1); r = R(0) + R(1)
            elif base in ('v_fmac_f32', 'v_dot2c_f32_bf16', 'v_writelane_b32', 'v_pk_fmac_f16', 'v_fmac_f16'):
                w = R(0); r = R(0) + allr(1)
            else:
                w = R(0); r = allr(1)
                if op.endswith('_dpp') or 'UNUSED_PRESERVE' in self.mods:
                    r = r + R(0)
                if base == 'v_cndmask_b32' and len(ops) == 3: r += [('vcc', 0)]
            r = r + [('exec', 0)]
        elif op.startswith('ds_'):
            self.kind = 'ds'
            if op.startswith('ds_read') or op.startswith('ds_bpermute') or op.startswith('ds_permute') or op.startswith('ds_swizzle') or '_rtn' in op:
                w = R(0); r = allr(1)
            else:
                r = allr(0)
        elif op.startswith('buffer_') or op.startswith('global_') or op.startswith('flat_'):
            self.kind = 'vmem'
            islds = re.search(r'\blds\b', self.mods) or '_lds_' in op
            if op in ('buffer_wbl2', 'buffer_inv'):
                pass
            elif islds:
                r = allr(0) + [('m0', 0)]
            elif '_load' in op:
                w = R(0); r = allr(1)
            elif '_atomic' in op:
                if re.search(r'\bsc0\b', self.mods):
                    w = R(0); r = allr(1)
                else:
                    r = allr(0)
            else:
                r = allr(0)
        elif op.startswith('s_load') or op.startswith('s_buffer_load') or op in ('s_memtime', 's_memrealtime'):
            self.kind = 'smem'; w = R(0); r = allr(1)
        elif op.startswith('s_'):
            self.kind = 'salu'
            if op.startswith('s_cbranch') or op == 's_branch':
                self.kind = 'branch'; self.target = ops[0]
                if 'vcc' in op: r = [('vcc', 0)]
                if 'exec' in op: r = [('exec', 0)]
                if 'scc' in op: r = [('scc', 0)]
            elif op in ('s_waitcnt', 's_nop', 's_barrier', 's_endpgm', 's_setprio', 's_sleep', 's_sethalt'):
                pass
            elif op.startswith('s_cmp') or op.startswith('s_bitcmp'):
                r = allr(0); w = [('scc', 0)]
            elif op.startswith('s_getreg'):
                w = R(0)
            elif op.startswith('s_setreg'):
                r = allr(0)
            elif 'saveexec' in op:
                w = R(0) + [('exec', 0), ('scc', 0)]; r = allr(1) + [('exec', 0)]
            else:
                w = R(0); r = allr(1)
                if op in ('s_addk_i32', 's_mulk_i32', 's_cmov_b32', 's_cmovk_i32'): r += R(0)
                if op in ('s_addc_u32', 's_subb_u32', 's_cselect_b32', 's_cselect_b64', 's_cmov_b32'): r += [('scc', 0)]
                if not op.startswith('s_mov') and not op.startswith('s_cselect') and not op.startswith('s_mul') and not op.startswith('s_cmov'):
                    w = w + [('scc', 0)]
        else:
            raise ValueError('unknown op ' + op)
        self.w = w; self.r = r

    def states(self):
        if self.kind in ('label', 'none'): return 0
        if self.op == 's_nop': return int(self.ops[0], 0) + 1
        return 1

def is_wide_store(ins):
    return ins.kind == 'vmem' and re.search(r'_store_dwordx[34]$', ins.op) is not None

def store_data(ins):
    if ins.op.startswith('buffer_'): return regs_in(ins.ops[0])
    return regs_in(ins.ops[1])

def need(prod, cons):
    n = 0
    pw = set(prod.w)
    vw = {x for x in pw if x[0] in 'va' and x[0] != 'vcc'}
    sw = {x for x in pw if x[0] == 's' or x[0] == 'vcc'}
    cr = set(cons.r); cw = set(cons.w)
    pb = re.sub(r'_(e32|e64|dpp|sdwa)$', '', prod.op); cb = re.sub(r'_(e32|e64|dpp|sdwa)$', '', cons.op)
    if prod.kind == 'valu':
        if cons.kind == 'mfma' and vw & cr: n = max(n, 2)
        if cons.kind == 'valu':
            if pb in TRANS and cb not in TRANS and vw & cr: n = max(n, 1)
            if pb in TRANS and cb in TRANS and vw & cr: n = max(n, 1)
            if cb in ('v_readlane_b32', 'v_readfirstlane_b32') and vw & set(regs_in(cons.ops[1])): n = max(n, 1)
            if cb.startswith('v_permlane') and vw & cr: n = max(n, 2)
            if cons.op.endswith('_dpp') and vw & cr: n = max(n, 2)
            if sw & cr:
                n = max(n, 2)
                if cb in ('v_readlane_b32', 'v_writelane_b32'): n = max(n, 4)
                if cb == 'v_div_fmas_f32': n = max(n, 4)
            if ('exec', 0) in pw:
                n = max(n, 5 if cons.op.endswith('_dpp') else 0)
                if cb in ('v_readlane_b32', 'v_readfirstlane_b32', 'v_writelane_b32') or cb.startswith('v_permlane'): n = max(n, 4)
            if ('op_sel' in prod.mods and not prod.op.startswith('v_pk')) or 'dst_sel:WORD' in prod.mods or 'dst_sel:BYTE' in prod.mods:
                if vw & (cr | cw): n = max(n, 1)
        if cons.kind == 'mfma' and ('exec', 0) in pw: n = max(n, 4)
        if cons.kind == 'vmem' and sw & cr: n = max(n, 5)
        if cons.kind in ('salu', 'smem', 'branch') and (sw & cr): n = max(n, 1 if cons.kind != 'smem' else 5)
        if pb in TRANS and cons.kind in ('ds', 'vmem') and vw & cr: n = max(n, 1)
    if prod.kind == 'salu':
        if ('m0', 0) in pw and ('m0', 0) in cr: n = max(n, 1)
    if prod.kind == 'mfma':
        p = MFMA_PASSES[prod.op]
        d = set(prod.w)
        t_ab = {2: 5, 4: 8, 8: 12, 16: 20}[p]
        t_ov = {2: 4, 4: 6, 8: 10, 16: 18}[p]
        if cons.kind == 'mfma':
            if d & set(cons.ab): n = max(n, t_ab)
            if d & set(cons.srcc):
                same = (prod.w == cons.srcc) and MFMA_PASSES[cons.op] == p
                n = max(n, (2 if p == 2 else 0) if same else t_ov)
            elif d & cw:
                n = max(n, t_ov)
        elif cons.kind in ('valu', 'ds', 'vmem'):
            if d & (cr | cw): n = max(n, t_ab)
        if cons.kind == 'valu' and set(prod.srcc) & cw:
            n = max(n, {2: 1, 4: 3, 8: 7, 16: 15}[p])
    if is_wide_store(prod) and cons.kind == 'valu' and set(store_data(prod)) & cw:
        n = max(n, 2)
    if is_wide_store(prod) and cons.kind in ('ds', 'vmem', 'mfma') and set(store_data(prod)) & cw:
        n = max(n, 1)
    return n

class Asm:
    def __init__(self):
        self.lines = []
        self.uid = 0
    def __call__(self, fmt, *a):
        for ln in fmt.split('\n'):
            ln = ln.strip()
            if ln: self.lines.append(ln)
    def emit(self, op, *args, mods=''):
        s = op + ' ' + ', '.join(str(x) for x in args)
        if mods: s += ' ' + mods
        self.lines.append(s)
    def label(self, name):
        self.lines.append(name + ':')
    def newlabel(self, base):
        self.uid += 1
        return f"L_{base}_{self.uid}"
    def c(self, text):
        self.lines.append('; ' + text)
    def __getattr__(self, name):
        if name.startswith(('v_', 's_', 'ds_', 'buffer_', 'global_')):
            def f(*args, mods=''):
                self.emit(name, *args, mods=mods)
            return f
        raise AttributeError(name)

def pad_hazards(lines, maxlook=24):
    ins = [Ins(l) for l in lines]
    changed = True
    total = 0
    while changed:
        changed = False
        labels = {x.label: i for i, x in enumerate(ins) if x.kind == 'label'}
        preds = {}
        for i, x in enumerate(ins):
            if x.kind == 'branch':
                preds.setdefault(labels[x.target], []).append(i)
        def back(i, dist, acc, cons, seen):
            j = i - 1
            while j >= 0 and dist < maxlook:
                x = ins[j]
                if x.kind == 'label':
                    for p in preds.get(j, []):
                        key = (p, dist)
                        if key not in seen:
                            seen.add(key)
                            back(p, dist + 1, acc, cons, seen)
                    j -= 1; continue
                if x.kind == 'none': j -= 1; continue
                if x.op in ('s_branch', 's_endpgm', 's_setpc_b64'):
                    return
                nd = need(x, cons)
                if nd > dist: acc[0] = max(acc[0], nd - dist)
                dist += x.states()
                j -= 1
        out = []
        i = 0
        while i < len(ins):
            x = ins[i]
            if x.kind not in ('label', 'none') and x.op != 's_nop':
                acc = [0]
                back(i, 0, acc, x, set())
                if acc[0] > 0:
                    k = acc[0]
                    new = []
                    while k > 0:
                        m = min(k, 16)
                        new.append(Ins(f"s_nop {m - 1}"))
                        k -= m
                    ins[i:i] = new
                    total += 1
                    changed = True
                    break
            i += 1
    return [x.text for x in ins], total

def pad_hazards_fast(lines, maxlook=22):
    ins = [Ins(l) for l in lines]
    total = 0
    for _round in range(6):
        labels = {x.label: i for i, x in enumerate(ins) if x.kind == 'label'}
        preds = {}
        for i, x in enumerate(ins):
            if x.kind == 'branch':
                preds.setdefault(labels[x.target], []).append(i)
        out = []
        added = 0
        def back_list(lst, j, dist, acc, cons, seen, use_orig_labels):
            while j >= 0 and dist < maxlook:
                x = lst[j]
                if x.kind == 'label':
                    for p in preds.get(labels[x.label], []):
                        key = (p, dist)
                        if key not in seen:
                            seen.add(key)
                            back_list(ins, p - 1, dist + 1, acc, cons, seen, True)
                    j -= 1; continue
                if x.kind == 'none': j -= 1; continue
                if x.op in ('s_branch', 's_endpgm', 's_setpc_b64'): return
                nd = need(x, cons)
                if nd > dist: acc[0] = max(acc[0], nd - dist)
                dist += x.states()
                j -= 1
        for x in ins:
            if x.kind not in ('label', 'none') and x.op != 's_nop':
                acc = [0]
                back_list(out, len(out) - 1, 0, acc, x, set(), False)
                k = acc[0]
                while k > 0:
                    m = min(k, 16)
                    out.append(Ins(f"s_nop {m - 1}"))
                    k -= m; added += 1
            out.append(x)
        ins = out
        total += added
        if added == 0: break
    return [x.text for x in ins], total

def lint_waits(lines, name='', max_steps=400000, loop_iters=2, take_fwd=None):
    ins = [Ins(l) for l in lines]
    labels = {x.label: i for i, x in enumerate(ins) if x.kind == 'label'}
    vm = []
    lg = []
    taken = {}
    probs = []
    pc = 0; steps = 0
    while pc < len(ins) and steps < max_steps:
        x = ins[pc]; steps += 1
        if x.kind in ('label', 'none'): pc += 1; continue
        if x.op == 's_endpgm': break
        if x.op == 's_waitcnt':
            t = x.text
            m = re.search(r'vmcnt\((\d+)\)', t)
            if m:
                n = int(m.group(1))
                while len(vm) > n: vm.pop(0)
            m = re.search(r'lgkmcnt\((\d+)\)', t)
            if m:
                n = int(m.group(1))
                if any(s for _, s in lg) and n != 0:
                    keep = [e for e in lg if e[1]]
                    ds = [e for e in lg if not e[1]]
                    lg = keep + ds
                else:
                    while len(lg) > n: lg.pop(0)
            pc += 1; continue
        touched = set(x.r) | set(x.w)
        touched.discard(('exec', 0)); touched.discard(('scc', 0))
        for q, nm in ((vm, 'vmcnt'), ([e[0] for e in lg], 'lgkmcnt')):
            for e in q:
                hit = e & touched
                if hit:
                    if x.kind in ('vmem', 'ds') and not (e & set(x.r)) and ((nm == 'vmcnt' and x.kind == 'vmem') or (nm == 'lgkmcnt' and x.kind == 'ds')):
                        continue
                    probs.append(f"{name}: line {pc}: '{x.text}' touches {sorted(hit)[:4]} with outstanding {nm}")
        if x.kind == 'vmem':
            if x.op not in ('buffer_wbl2', 'buffer_inv') or True:
                vm.append(set(x.w))
                if len(vm) > 63: probs.append(f"{name}: line {pc}: vmcnt overflow (>63 outstanding)")
        elif x.kind == 'ds':
            lg.append((set(x.w), False))
            if len(lg) > 15:
                pass
        elif x.kind == 'smem':
            lg.append((set(x.w), True))
        if x.kind == 'branch':
            tgt = labels[x.target]
            if x.op == 's_branch':
                if tgt < pc:
                    c = taken.get(pc, 0)
                    if c >= loop_iters: break
                    taken[pc] = c + 1
                pc = tgt; continue
            if tgt < pc:
                c = taken.get(pc, 0)
                if c < loop_iters - 1:
                    taken[pc] = c + 1; pc = tgt; continue
                taken[pc] = 0
            elif take_fwd is not None and take_fwd(x.target):
                pc = tgt; continue
        pc += 1
    return probs
```

```python
from asmgen import *
from lanes import *
import numpy as np

KA = dict(x=0, wq=8, wk=16, wv=24, wo=32, bx=40, w1=48, b1=56, w2=64, b2=72, c=80, wmod=88, out=96, dbg=104, ws=112)
WS_MOD  = 0x0
WS_KM   = 0x8000
WS_STAT = 0x10000
WS_UP   = 0x100000
WS_KF   = 0x200000
WS_VF   = 0x220000
WS_H1   = 0x400000
WS_O    = 0x800000
WS_X1   = 0xC00000
WS_W1P  = 0x1000000
WS_HH   = 0x2000000
WS_DBG  = 0x8000000
WS_SIZE = 268435456

import os
DEBUG_STAMPS = os.environ.get('STAMPS', '0') == '1'

class Kern:
    def __init__(self, name, nthreads, lds, grid, nv=256):
        self.name, self.nthreads, self.lds, self.grid = name, nthreads, lds, grid
        self.a = Asm()
        self.v = Alloc('v', 1, nv)
        self.s = Alloc('s', 4, 100)
        self.L = LaneCtx(self.a, nthreads)
        self.tid = LV(Reg('v', 0), self.L.tid)
        self.uid = 0
    def stamp_init(self, kidx):
        self.dbg = DEBUG_STAMPS
        if not self.dbg: return
        a = self.a
        self.st_srd = self.s(4); self.st_t = self.s(4); self.st_v = self.v(4, 2); self.st_p = self.s(2)
        a.s_load_dwordx2(self.st_p, 's[0:1]', KA['ws'])
        a.s_memrealtime(self.st_t.sub(0, 2))
        a('s_waitcnt lgkmcnt(0)')
        a.s_lshl_b32(self.st_srd[2], 's2', 11)
        a.s_add_u32(self.st_srd[2], self.st_srd[2], hex(WS_DBG + kidx * 0x100000))
        a.s_add_u32(self.st_srd[0], self.st_p[0], self.st_srd[2]); a.s_addc_u32(self.st_srd[1], self.st_p[1], 0)
        a.s_mov_b32(self.st_srd[2], 2048); a.s_mov_b32(self.st_srd[3], '0x20000')
        a.v_lshrrev_b32(self.st_v[2], 6, 'v0'); a.v_lshlrev_b32(self.st_v[2], 7, self.st_v[2])
        self._stamp_store(0)
    def _stamp_store(self, i):
        a = self.a
        a.v_mov_b32(self.st_v[0], self.st_t[0]); a.v_mov_b32(self.st_v[1], self.st_t[1])
        a.buffer_store_dwordx2(self.st_v.sub(0, 2), self.st_v[2], self.st_srd, 0, mods=f'offen offset:{8 * i}')
    def stamp(self, i):
        if not self.dbg: return
        a = self.a
        a.s_memrealtime(self.st_t.sub(0, 2))
        a('s_waitcnt lgkmcnt(0)')
        self._stamp_store(i)
    def lbl(self, base):
        self.uid += 1
        return f"L_{self.name}_{base}_{self.uid}"
    def ptr(self, key):
        r = self.s(2)
        self.a.s_load_dwordx2(r, 's[0:1]', KA[key])
        return r
    def srd(self, ptr, off, nbytes, dyn_off=None, dst=None):
        a = self.a
        r = dst if dst is not None else self.s(4)
        if off == 0 and dyn_off is None:
            a.s_mov_b32(r[0], ptr[0]); a.s_mov_b32(r[1], ptr[1])
        else:
            if off != 0:
                a.s_add_u32(r[0], ptr[0], hex(off)); a.s_addc_u32(r[1], ptr[1], 0)
                if dyn_off is not None:
                    a.s_add_u32(r[0], r[0], dyn_off); a.s_addc_u32(r[1], r[1], 0)
            else:
                a.s_add_u32(r[0], ptr[0], dyn_off); a.s_addc_u32(r[1], ptr[1], 0)
        if isinstance(nbytes, int): a.s_mov_b32(r[2], hex(nbytes))
        else: a.s_mov_b32(r[2], nbytes)
        a.s_mov_b32(r[3], '0x20000')
        return r
    def exit_if_wg_ge(self, n):
        self.a.s_cmp_ge_u32('s2', n)
        self.a.s_cbranch_scc1(f'L_{self.name}_end')
    def finish(self):
        a = self.a
        a.label(f'L_{self.name}_end')
        a('s_endpgm')
        lines, npad = pad_hazards_fast(a.lines)
        probs = lint_waits(lines, self.name)
        probs += lint_waits(lines, self.name + '(fwd)', take_fwd=lambda t: not t.endswith('_end'))
        for p in probs[:20]: print('LINT', p)
        nv = max(8, (self.v.hi + 7) // 8 * 8)
        ns = self.s.hi
        body = '\n'.join(('  ' + l if not l.endswith(':') else l) for l in lines)
        txt = f'''.globl {self.name}
.p2align 8
.type {self.name},@function
{self.name}:
{body}
'''
        desc = f'''.amdhsa_kernel {self.name}
  .amdhsa_next_free_vgpr {nv}
  .amdhsa_next_free_sgpr {max(ns, 16)}
  .amdhsa_accum_offset {nv}
  .amdhsa_group_segment_fixed_size 0
  .amdhsa_kernarg_size 120
  .amdhsa_user_sgpr_count 2
  .amdhsa_user_sgpr_kernarg_segment_ptr 1
  .amdhsa_system_sgpr_workgroup_id_x 1
  .amdhsa_float_denorm_mode_32 3
  .amdhsa_float_denorm_mode_16_64 3
.end_amdhsa_kernel
'''
        print(f'{self.name}: {len(lines)} lines, vgpr {nv}, sgpr {ns}, pads {npad}, lds {self.lds}')
        return txt, desc

def assemble_file(kerns, header_path, out_path):
    hdr = []
    for ln in open(header_path).read().split('\n'):
        if ln.startswith(';') and '@launch' not in ln and 'Override launch' not in ln and 'grid=ceil' not in ln: hdr.append(ln)
        elif not ln.startswith(';'): break
    s = '\n'.join(hdr) + '\n'
    for k, _, _ in kerns:
        s += f'; @launch kernel={k.name} grid=({k.grid},1,1) block=({k.nthreads},1,1) lds={k.lds}\n'
    s += '.amdgcn_target "amdgcn-amd-amdhsa--gfx950"\n.text\n'
    seen = set()
    for k, txt, _ in kerns:
        if k.name in seen: continue
        seen.add(k.name); s += txt
    s += '.section .rodata,"a"\n'
    seen = set()
    for k, _, desc in kerns:
        if k.name in seen: continue
        seen.add(k.name); s += '.p2align 6\n' + desc
    open(out_path, 'w').write(s)

def wave_sum_dpp(a, regs):
    for mod in ('row_shr:1', 'row_shr:2', 'row_shr:4', 'row_shr:8'):
        for r in regs: a.v_add_f32_dpp(r, r, r, mods=f'{mod} row_mask:0xf bank_mask:0xf bound_ctrl:0')
    for r in regs: a.v_add_f32_dpp(r, r, r, mods='row_bcast:15 row_mask:0xa bank_mask:0xf')
    for r in regs: a.v_add_f32_dpp(r, r, r, mods='row_bcast:31 row_mask:0xc bank_mask:0xf')

def unpack_bf16(a, dst_lo, dst_hi, src):
    a.v_lshlrev_b32(dst_lo, 16, src)
    a.v_and_b32(dst_hi, '0xffff0000', src)
```

```python
from common import *
from k12 import fhex, round_bf16

def w_swz_fn(CH):
    if CH == 28: return lambda k: 2 * ((k >> 3) & 1)
    if CH == 8:  return lambda k: 2 * (((k >> 1) & 1) | (((k >> 3) & 1) << 1))
    if CH == 16: return lambda k: 2 * ((k & 3) + 4 * ((k >> 3) & 1))
    raise ValueError

def emit_w_swz(L, dst, tmp, kv, CH):
    if CH == 28:
        t = L.bfe(dst, kv, 3, 1); return L.shl(dst, t, 1)
    if CH == 8:
        t = L.and_(dst, kv, 2); u = L.bfe(tmp, kv, 3, 1); return L.lshl_or(dst, u, 2, t)
    if CH == 16:
        t = L.and_(dst, kv, 3); u = L.bfe(tmp, kv, 3, 1); t = L.lshl_or(dst, u, 2, t); return L.shl(dst, t, 1)

class Gemm:
    def __init__(self, k, BM, BN, WM, WN, nstage, NS, ldx, ldw, lds0=0):
        self.k = k; self.BM, self.BN, self.WM, self.WN = BM, BN, WM, WN
        self.nstage, self.NS, self.ldx, self.ldw, self.lds0 = nstage, NS, ldx, ldw, lds0
        self.CH = BN // 8
        self.XB = BM * 128; self.WB = 64 * BN * 2
        self.SLOT = self.XB + self.WB
        self.NX = BM // 8 // 4; self.NW = self.CH // 4; self.NI = self.NX + self.NW
        self.TM, self.TN = BM // WM, BN // WN
        self.mt, self.nt = self.TM // 16, self.TN // 16
        assert WM * WN == 4 and (BM // 8) % 4 == 0 and self.CH % 4 == 0

    def loader_setup(self, lane_, w_, rX, rW):
        k, L, v, s = self.k, self.k.L, self.k.v, self.k.s
        self.rX, self.rW = rX, rW
        t1, t2, t3 = v(), v(), v()
        self.vX = v(self.NX); self.vW = v(self.NW)
        r0 = L.shr(t1, lane_, 3); r0 = L.lshl_add(t1, w_, 3, r0)
        z = L.bfe(t2, r0, 1, 3); c = L.and_(t3, lane_, 7); c = L.xor(t2, c, z)
        b = L.mul(t1, self.ldx, r0); b = L.lshl_add(self.vX[0], c, 4, b)
        for j in range(1, self.NX): L.add(self.vX[j], 32 * j * self.ldx, b)
        l = L.tid & 63; w = w_.val
        for j in range(self.NX):
            row = 8 * (4 * j + w) + (l >> 3)
            ref = row * self.ldx + (((l & 7) ^ ((row >> 1) & 7)) * 16)
            got = b.val + 32 * j * self.ldx
            assert (ref == got).all()
        g = w_swz_fn(self.CH)
        for j in range(self.NW):
            idx = L.lshl_add(t1, w_, 6, lane_)
            if j: idx = L.add(t1, 256 * j, idx)
            if self.CH == 28:
                kk = L.mul(t2, 2341, idx); kk = L.shr(t2, kk, 16)
                assert (kk.val == idx.val // 28).all()
                m = L.mul(t3, 28, kk)
                k.a.v_sub_u32(t3, t1, t3); pos = L.mk(t3, idx.val - m.val)
            else:
                sh = {8: 3, 16: 4}[self.CH]
                kk = L.shr(t2, idx, sh); pos = L.and_(t3, idx, self.CH - 1)
            sw = emit_w_swz(L, t1, self.vW[j], kk, self.CH)
            ch = L.xor(t3, pos, sw)
            b = L.mul(t2, self.ldw, kk); r = L.lshl_add(self.vW[j], ch, 4, b)
            idxr = 64 * (4 * j + w_.val) + l; kr = idxr // self.CH; pr = idxr % self.CH
            ref = kr * self.ldw + ((pr ^ np.array([g(int(x)) for x in kr])) * 16)
            act = (L.tid >> 6) >= 0
            assert (ref == r.val).all()
        self.sKX, self.sKW, self.sM = s(), s(), s()
        self.sW1k = s()

    def loader_issue(self, slot_imm=None):
        a = self.k.a
        for j in range(self.NX):
            a.s_add_u32('m0', self.sM, 4096 * j)
            a.buffer_load_dwordx4(self.vX[j], self.rX, self.sKX, mods='offen lds')
        for j in range(self.NW):
            a.s_add_u32('m0', self.sM, self.XB + 4096 * j)
            a.buffer_load_dwordx4(self.vW[j], self.rW, self.sKW, mods='offen lds')
        a.s_add_u32(self.sKX, self.sKX, 128)
        a.s_add_u32(self.sKW, self.sKW, 64 * self.ldw)
        a.s_add_u32(self.sM, self.sM, self.SLOT)
        a.s_cmp_ge_u32(self.sM, self.sEnd)
        a.s_cselect_b32('s3', self.NS * self.SLOT, 0)
        a.s_sub_u32(self.sM, self.sM, 's3')

    def loader_run(self, sw, kx0=0, kw0=0, pre_issue=None, stampfn=None):
        k, a, s = self.k, self.k.a, self.k.s
        NS, n, NI = self.NS, self.nstage, self.NI
        self.sEnd = s()
        a.s_lshl_b32(self.sM, sw, 10); a.s_add_u32(self.sM, self.sM, self.lds0)
        a.s_add_u32(self.sEnd, self.sM, NS * self.SLOT)
        if isinstance(kx0, int): a.s_mov_b32(self.sKX, kx0)
        else: a.s_mov_b32(self.sKX, kx0)
        if isinstance(kw0, int): a.s_mov_b32(self.sKW, kw0)
        else: a.s_mov_b32(self.sKW, kw0)
        npro = min(NS, n)
        for i in range(npro): self.loader_issue()
        if pre_issue: pre_issue()
        extra = getattr(self, 'extra_vm', 0)
        a(f's_waitcnt vmcnt({min(63, (npro - 1) * NI + extra)})')
        a('s_barrier')
        nsteady = n - NS
        first = True
        if nsteady > 0:
            sc = s()
            a.s_mov_b32(sc, nsteady)
            lab = k.lbl('ldloop')
            a.label(lab)
            a(f's_waitcnt vmcnt({(NS - 2) * NI})')
            a('s_barrier')
            self.loader_issue()
            a.s_sub_u32(sc, sc, 1)
            a.s_cmp_lg_u32(sc, 0)
            a.s_cbranch_scc1(lab)
        for st in range(max(0, n - NS), n):
            issued_last = n - 1
            rem = max(0, issued_last - (st + 1))
            a(f's_waitcnt vmcnt({rem * NI})')
            a('s_barrier')

    def consumer_setup(self, lane_, w_):
        k, L, v, s = self.k, self.k.L, self.k.v, self.k.s
        t1, t2, t3 = v(), v(), v()
        WN = self.WN
        l = L.tid & 63
        wv = w_.val
        wm_v, wn_v = wv // WN, wv % WN
        self.bX = v(2)
        m = L.and_(t1, lane_, 15); z = L.bfe(t2, lane_, 1, 3); g16 = L.shr(t3, lane_, 4); c = L.xor(t2, z, g16)
        b = L.shl(self.bX[0], m, 7); b = L.lshl_add(self.bX[0], c, 4, b)
        wm = L.shr(t1, w_, {1: 0, 2: 1, 4: 2}[WN])
        b = L.lshl_add(self.bX[0], wm, int(np.log2(self.TM * 128)), b)
        b1 = L.xor(self.bX[1], b, 64)
        for st, reg in ((0, b), (1, b1)):
            row = wm_v * self.TM + (l & 15)
            ref = row * 128 + (((4 * st + (l >> 4)) ^ ((row >> 1) & 7)) << 4)
            assert (reg.val == ref).all()
        g = w_swz_fn(self.CH); CH = self.CH
        def waddr(st, half, t):
            kk = 32 * st + 8 * (l >> 4) + 4 * half + ((l & 15) >> 2)
            ch = wn_v * (self.TN // 8) + 2 * t + ((l & 3) >> 1)
            gk = np.array([g(int(x)) for x in kk])
            return kk * CH * 16 + ((ch ^ gk) << 4) + (l & 1) * 8
        pats = []
        self.wref = {}
        for st in range(2):
            for half in range(2):
                for t in range(self.nt):
                    ad = waddr(st, half, t)
                    for pi, (rep, arr) in enumerate(pats):
                        dlt = ad - arr
                        if (dlt == dlt[0]).all() and 0 <= dlt[0] < 32768:
                            self.wref[(st, half, t)] = (pi, int(dlt[0])); break
                    else:
                        pats.append(((st, half, t), ad)); self.wref[(st, half, t)] = (len(pats) - 1, 0)
        self.bW = v(len(pats))
        wn = L.and_(t1, w_, WN - 1)
        for pi, ((st, half, t), arr) in enumerate(pats):
            kk = L.shr(t2, lane_, 4); kk = L.shl(t2, kk, 3); r = L.bfe(t3, lane_, 2, 2); kk = L.add(t2, kk, r)
            if 32 * st + 4 * half: kk = L.add(t2, 32 * st + 4 * half, kk)
            sw = emit_w_swz(L, t3, self.bW[pi], kk, CH)
            c1 = L.bfe(self.bW[pi], lane_, 1, 1)
            tw = v()
            ch = L.mul(tw, self.TN // 8, wn); ch = L.add(tw, ch, c1)
            if t: ch = L.add(tw, 2 * t, ch)
            ch = L.xor(t3, ch, sw)
            b = L.mul(t2, CH * 16, kk); b = L.lshl_add(t2, ch, 4, b)
            c0 = L.and_(t3, lane_, 1); r = L.lshl_add(self.bW[pi], c0, 3, b)
            r = L.add(self.bW[pi], self.XB, r)
            assert (r.val - self.XB == arr).all()
        self.npat = len(pats)
        self.aX = v(2); self.aW = v(self.npat)
        self.acc = v(4 * self.mt * self.nt, 4)
        self.fX = [v(4 * self.mt, 4) for _ in range(2)]
        self.fW = [v(4 * self.nt, 4) for _ in range(2)]
        self.sSlot, self.sSlotEnd = s(), s()

    def _set_addr(self):
        a = self.k.a
        out = []
        for i in range(2): out.append(('v_add_u32', self.aX[i], self.sSlot, self.bX[i]))
        for i in range(self.npat): out.append(('v_add_u32', self.aW[i], self.sSlot, self.bW[i]))
        return out

    def _reads(self, st, setidx):
        out = []
        for m in range(self.mt):
            out.append(f'ds_read_b128 {self.fX[setidx].sub(4 * m, 4)}, {self.aX[st]} offset:{2048 * m}')
        for t in range(self.nt):
            for half in range(2):
                pi, off = self.wref[(st, half, t)]
                out.append(f'ds_read_b64_tr_b16 {self.fW[setidx].sub(4 * t + 2 * half, 2)}, {self.aW[pi]} offset:{off}')
        return out

    def _mfmas(self, setidx, first=False):
        out = []
        for t in range(self.nt):
            for m in range(self.mt):
                acc = self.acc.sub(4 * (m * self.nt + t), 4)
                out.append(f'v_mfma_f32_16x16x32_bf16 {acc}, {self.fW[setidx].sub(4 * t, 4)}, {self.fX[setidx].sub(4 * m, 4)}, {0 if first else acc}')
        return out

    def _interleave(self, mf, others):
        a = self.k.a
        n, m = len(mf), len(others)
        j = 0
        for i, x in enumerate(mf):
            a(x)
            tgt = (i + 1) * m // n if n else m
            tgt = min(m, int(np.ceil((i + 1) * m / (0.8 * n))))
            while j < tgt:
                a(others[j]); j += 1
        while j < m:
            a(others[j]); j += 1

    def _adv_slot(self):
        return [f's_add_u32 {self.sSlot}, {self.sSlot}, {self.SLOT}', f's_cmp_ge_u32 {self.sSlot}, {self.sSlotEnd}',
                f's_cselect_b32 s3, {self.NS * self.SLOT}, 0', f's_sub_u32 {self.sSlot}, {self.sSlot}, s3']

    def consumer_run(self):
        k, a, s = self.k, self.k.a, self.k.s
        n = self.nstage
        a.s_mov_b32(self.sSlot, self.lds0); a.s_mov_b32(self.sSlotEnd, self.lds0 + self.NS * self.SLOT)
        for x in self._set_addr(): a.emit(*x)
        for i in range(len(self.acc)): a.v_mov_b32(self.acc[i], 0)
        a('s_barrier')
        for x in self._reads(0, 0): a(x)
        sc = s()
        a.s_mov_b32(sc, n)
        lab = k.lbl('cloop')
        a.label(lab)
        a('s_waitcnt lgkmcnt(0)')
        self._interleave(self._mfmas(0), self._reads(1, 1))
        a('s_waitcnt lgkmcnt(0)')
        a('s_barrier')
        adv = self._adv_slot() + [' '.join([x[0], ', '.join(str(y) for y in x[1:])]) for x in self._set_addr()]
        self._interleave(self._mfmas(1), adv + self._reads(0, 0))
        a.s_sub_u32(sc, sc, 1)
        a.s_cmp_lg_u32(sc, 0)
        a.s_cbranch_scc1(lab)
        a('s_waitcnt lgkmcnt(0)')
```

```python
from common import *

LOG2E = 1.4426950408889634
def fhex(x):
    return hex(int(np.float32(x).view(np.uint32)))

def round_bf16(a, r, tmp=None):
    a.v_cvt_pk_bf16_f32(r, r, r)
    a.v_and_b32(r, '0xffff0000', r)

def gen_k1():
    k = Kern('k1_mod_kernel', 1024, 8192, 192)
    a, L, v, s = k.a, k.L, k.v, k.s
    k.exit_if_wg_ge(192)
    k.stamp_init(0)
    pc = k.ptr('c'); pw = k.ptr('wmod'); pws = k.ptr('ws')
    sx, si, sch = s(), s(), s()
    a.s_and_b32(sx, 's2', 7); a.s_lshr_b32(si, 's2', 3)
    a.s_lshr_b32(sch, si, 1); a.s_lshl_b32(sch, sch, 4); a.s_lshl_b32(sx, sx, 1); a.s_add_u32(sch, sch, sx)
    a.s_and_b32(si, si, 1); a.s_add_u32(sch, sch, si)
    voff, vc, vt = v(), v(), v()
    rg = L.shr(vt, k.tid, 2)
    t1 = L.mul(voff, 12288, rg)
    t2 = L.and_(vc, k.tid, 3)
    L.lshl_add(voff, t2, 4, t1)
    L.shl(vc, rg, 1)
    a('s_waitcnt lgkmcnt(0)')
    rW = k.srd(pw, 0, 1024 * 6144 * 2); rC = k.srd(pc, 0, 2048); rM = k.srd(pws, WS_MOD, 6144 * 4)
    so = s(4)
    a.s_lshl_b32(so[0], sch, 6)
    for i in range(1, 4): a.s_add_u32(so[i], so[i - 1], hex(256 * 12288))
    w = v(16, 4); c = v(4)
    for i in range(4): a.buffer_load_ushort(c[i], vc, rC, 0, mods=f'offen offset:{512 * i}')
    for i in range(4): a.buffer_load_dwordx4(w.sub(4 * i, 4), voff, rW, so[i], mods='offen')
    acc = v(8); e = v(4); lo, hi = v(), v()
    a('s_waitcnt vmcnt(4)')
    for i in range(4): a.v_lshlrev_b32(c[i], 16, c[i])
    for i in range(4): a.v_mul_f32(e[i], fhex(-LOG2E), c[i])
    for i in range(4): a.v_exp_f32(e[i], e[i])
    for i in range(4): a.v_add_f32(e[i], 1.0, e[i])
    for i in range(4): a.v_rcp_f32(e[i], e[i])
    for i in range(4): a.v_mul_f32(c[i], c[i], e[i])
    for i in range(4): round_bf16(a, c[i])
    for i in range(4):
        a(f's_waitcnt vmcnt({3 - i})')
        for j in range(4):
            unpack_bf16(a, lo, hi, w[4 * i + j])
            if i == 0:
                a.v_mul_f32(acc[2 * j], c[i], lo); a.v_mul_f32(acc[2 * j + 1], c[i], hi)
            else:
                a.v_fmac_f32(acc[2 * j], c[i], lo); a.v_fmac_f32(acc[2 * j + 1], c[i], hi)
    for m in ('row_ror:4', 'row_ror:8'):
        for j in range(8): a.v_add_f32_dpp(acc[j], acc[j], acc[j], mods=f'{m} row_mask:0xf bank_mask:0xf')
    va = v()
    t = L.shr(va, k.tid, 4); t = L.shl(va, t, 7)
    t3 = L.and_(vt, k.tid, 3); L.lshl_add(va, t3, 5, t)
    L.and_(vt, k.tid, 15)
    a.v_cmp_gt_u32('vcc', 4, vt)
    sv = s(2)
    a.s_and_saveexec_b64(sv, 'vcc')
    a.ds_write_b128(va, acc.sub(0, 4)); a.ds_write_b128(va, acc.sub(4, 4), mods='offset:16')
    a.s_mov_b64('exec', sv)
    k.stamp(1)
    a('s_waitcnt lgkmcnt(0)\ns_barrier')
    k.stamp(2)
    sw = s()
    a.v_readfirstlane_b32(sw, 'v0')
    a.s_cmp_ge_u32(sw, 64)
    a.s_cbranch_scc1(f'L_{k.name}_end')
    t = L.and_(va, k.tid, 31); t = L.shl(va, t, 2)
    th = L.bfe(vt, k.tid, 5, 1); L.lshl_add(va, th, 12, t)
    p = v(32)
    for i in range(32): a.ds_read_b32(p[i], va, mods=f'offset:{128 * i}')
    for st, n in ((16, 15), (8, 7), (4, 3), (2, 1), (1, 0)):
        pass
    a('s_waitcnt lgkmcnt(0)')
    n = 32
    while n > 1:
        for i in range(n // 2): a.v_add_f32(p[i], p[i], p[i + n // 2])
        n //= 2
    a.v_mov_b32(p[1], p[0])
    a.v_permlane32_swap_b32(p[0], p[1])
    a.v_add_f32(p[0], p[0], p[1])
    round_bf16(a, p[0])
    sb = s()
    a.s_lshr_b32(sb, sch, 5)
    lab = k.lbl('noadd'); lab2 = k.lbl('add')
    a.s_cmp_eq_u32(sb, 1); a.s_cbranch_scc1(lab2)
    a.s_cmp_eq_u32(sb, 4); a.s_cbranch_scc0(lab)
    a.label(lab2)
    a.v_add_f32(p[0], 1.0, p[0]); round_bf16(a, p[0])
    a.label(lab)
    t = L.and_(va, k.tid, 31); L.shl(va, t, 2)
    a.s_lshl_b32(sb, sch, 7)
    a.v_cmp_gt_u32('vcc', 32, 'v0')
    a.s_and_saveexec_b64(sv, 'vcc')
    a.buffer_store_dword(p[0], va, rM, sb, mods='offen')
    a.s_mov_b64('exec', sv)
    k.stamp(3)
    return k

def gen_k2():
    LDS_R, LDS_S, LDS_H, LDS_W = 0, 16384, 20480, 53248
    k = Kern("k2_ln_kv_kernel", 512, LDS_W + 65536, 256)
    a, L, v, s = k.a, k.L, k.v, k.s
    k.exit_if_wg_ge(256)
    k.stamp_init(1)
    px = k.ptr('x'); pk = k.ptr('wk'); pv = k.ptr('wv'); pws = k.ptr('ws')
    sR, ssel, st = s(), s(), s()
    a.s_lshr_b32(sR, 's2', 1); a.s_and_b32(ssel, 's2', 1)
    lane, wv, vt, vt2 = v(), v(), v(), v()
    lane_ = L.and_(lane, k.tid, 63); wave_ = L.shr(wv, k.tid, 6)
    swv = s(); swave = L.rfl(swv, wave_)
    vw = v()
    t = L.shr(vt, lane_, 2); t = L.shl(vw, t, 6)
    u = L.shr(vt, lane_, 5); u = L.shl(vt, u, 1); p_ = L.and_(vt2, lane_, 3); u = L.xor(vt, u, p_)
    L.lshl_add(vw, u, 4, t)
    vx = v()
    t = L.shl(vt, wave_, 12); L.lshl_add(vx, lane_, 4, t)
    vm = v(); L.shl(vm, lane_, 5)
    a('s_waitcnt lgkmcnt(0)')
    a.s_cmp_eq_u32(ssel, 0)
    pw = s(2); a.s_cselect_b32(pw[0], pk[0], pv[0]); a.s_cselect_b32(pw[1], pk[1], pv[1])
    rW = k.srd(pw, 0, 65536)
    a.s_lshl_b32(st, sR, 15)
    rX = k.srd(px, 0, 32768, dyn_off=st)
    rH = k.srd(pws, WS_H1, 32768, dyn_off=st)
    rM = k.srd(pws, WS_MOD, 6144 * 4)
    x = v(16, 4)
    for i in range(2):
        for h in range(2):
            a.buffer_load_dwordx4(x.sub(8 * i + 4 * h, 4), vx, rX, 0, mods=f'offen offset:{2048 * i + 1024 * h}')
    sa = v(16, 4); g = v(16, 4)
    s2k = s(); a.s_mov_b32(s2k, 2048)
    s4k = s(); a.s_mov_b32(s4k, 4096)
    s6k = s(); a.s_mov_b32(s6k, 6144)
    a.buffer_load_dwordx4(sa.sub(0, 4), vm, rM, 0, mods='offen'); a.buffer_load_dwordx4(sa.sub(4, 4), vm, rM, 0, mods='offen offset:16')
    a.buffer_load_dwordx4(sa.sub(8, 4), vm, rM, s2k, mods='offen'); a.buffer_load_dwordx4(sa.sub(12, 4), vm, rM, s2k, mods='offen offset:16')
    a.buffer_load_dwordx4(g.sub(0, 4), vm, rM, s4k, mods='offen'); a.buffer_load_dwordx4(g.sub(4, 4), vm, rM, s4k, mods='offen offset:16')
    a.buffer_load_dwordx4(g.sub(8, 4), vm, rM, s6k, mods='offen'); a.buffer_load_dwordx4(g.sub(12, 4), vm, rM, s6k, mods='offen offset:16')
    sm, so = s(), s()
    a.s_lshl_b32(so, swv, 13)
    for j in range(8):
        a.s_add_u32('m0', so, LDS_W + 1024 * j)
        if j: a.s_add_u32(sm, so, 1024 * j)
        a.buffer_load_dwordx4(vw, rW, sm if j else so, mods='offen lds')
    f = v(32, 2)
    a('s_waitcnt vmcnt(16)')
    for i in range(2):
        for j in range(8): unpack_bf16(a, f[16 * i + 2 * j], f[16 * i + 2 * j + 1], x[8 * i + j])
    sm_ = v(2); smu = s(2); srs = s(2)
    for i in range(2):
        a.v_add_f32(sm_[i], f[16 * i], f[16 * i + 1])
        for j in range(2, 16): a.v_add_f32(sm_[i], sm_[i], f[16 * i + j])
        a.v_mul_f32(sm_[i], fhex(1 / 1024), sm_[i])
    wave_sum_dpp(a, [sm_[0], sm_[1]])
    for i in range(2): a.v_readlane_b32(smu[i], sm_[i], 63)
    for i in range(2):
        for j in range(16): a.v_subrev_f32(f[16 * i + j], smu[i], f[16 * i + j])
    for i in range(2):
        a.v_mul_f32(sm_[i], f[16 * i], f[16 * i])
        for j in range(1, 16): a.v_fmac_f32(sm_[i], f[16 * i + j], f[16 * i + j])
        a.v_mul_f32(sm_[i], fhex(1 / 1024), sm_[i])
    wave_sum_dpp(a, [sm_[0], sm_[1]])
    for i in range(2): a.v_add_f32(sm_[i], fhex(1e-5), sm_[i])
    for i in range(2): a.v_rsq_f32(sm_[i], sm_[i])
    for i in range(2): a.v_readlane_b32(srs[i], sm_[i], 63)
    a('s_waitcnt vmcnt(8)')
    for i in range(2):
        for j in range(16):
            a.v_mul_f32(f[16 * i + j], srs[i], f[16 * i + j])
            a.v_fma_f32(f[16 * i + j], f[16 * i + j], g[j], sa[j])
        for j in range(8): a.v_cvt_pk_bf16_f32(x[8 * i + j], f[16 * i + 2 * j], f[16 * i + 2 * j + 1])
    vh = v(2)
    for i in range(2):
        r = L.lshl_add(vt, wave_, 1, i)
        c = L.xor(vt2, lane_, r)
        t = L.shl(vh[i], r, 11); t = L.lshl_add(vh[i], c, 4, t)
        L.add(vh[i], LDS_H, t)
    for i in range(2):
        a.ds_write_b128(vh[i], x.sub(8 * i, 4)); a.ds_write_b128(vh[i], x.sub(8 * i + 4, 4), mods='offset:1024')
    lab = k.lbl('nostore')
    a.s_cmp_eq_u32(ssel, 0); a.s_cbranch_scc0(lab)
    for i in range(2):
        for h in range(2):
            a.buffer_store_dwordx4(x.sub(8 * i + 4 * h, 4), vx, rH, 0, mods=f'offen offset:{2048 * i + 1024 * h}')
    a.label(lab)
    k.stamp(1)
    a('s_waitcnt vmcnt(0) lgkmcnt(0)\ns_barrier')
    k.stamp(2)
    va = v(2); vb = v()
    g16 = L.shr(vt, lane_, 4)
    kk = L.shl(va[0], g16, 3); r_ = L.bfe(vt2, lane_, 2, 2); kk = L.add(va[0], kk, r_)
    kk = L.lshl_add(va[0], wave_, 7, kk)
    base = L.shl(va[0], kk, 6)
    c1 = L.bfe(vt2, lane_, 1, 1); b3 = L.and_(vt, g16, 1); b3 = L.shl(vt, b3, 1)
    ch0 = L.xor(vt, b3, c1)
    c0 = L.and_(vt2, lane_, 1); c0 = L.shl(vt2, c0, 3)
    t0 = L.lshl_add(va[0], ch0, 4, base); t0 = L.add(va[0], t0, c0)
    t1 = L.xor(va[1], t0, 32)
    for t_, reg in ((0, t0), (1, t1)):
        l = L.tid & 63; w_ = L.tid >> 6
        kref = 128 * w_ + 8 * (l >> 4) + ((l & 15) >> 2)
        ch = (2 * t_ + ((l & 3) >> 1)) ^ (2 * ((kref >> 3) & 1))
        assert (reg.val == kref * 64 + ch * 16 + (l & 1) * 8).all()
    m_ = L.and_(vt, lane_, 15); g16 = L.shr(vt2, lane_, 4)
    ch = L.lshl_add(vb, wave_, 4, g16)
    vbs = v(4)
    for s_ in range(4):
        c_ = L.add(vbs[s_], 4 * s_, ch); c_ = L.xor(vbs[s_], c_, m_)
        c_ = L.shl(vbs[s_], c_, 4); c_ = L.lshl_add(vbs[s_], m_, 11, c_); L.add(vbs[s_], LDS_H, c_)
    A = v(32, 4); B = v(16, 4); acc = v(8, 4)
    for s_ in range(4):
        a.ds_read_b128(B.sub(4 * s_, 4), vbs[s_])
        for t_ in range(2):
            for h in range(2):
                a.ds_read_b64_tr_b16(A.sub(8 * s_ + 4 * t_ + 2 * h, 2), va[t_], mods=f'offset:{LDS_W + (32 * s_ + 4 * h) * 64}')
    a('s_waitcnt lgkmcnt(0)')
    for s_ in range(4):
        for t_ in range(2):
            a.v_mfma_f32_16x16x32_bf16(acc.sub(4 * t_, 4), A.sub(8 * s_ + 4 * t_, 4), B.sub(4 * s_, 4), 0 if s_ == 0 else acc.sub(4 * t_, 4))
    vr = v()
    t = L.shl(vr, wave_, 11); t = L.lshl_add(vr, m_, 7, t); g16 = L.shr(vt2, lane_, 4); t = L.lshl_add(vr, g16, 4, t); L.add(vr, LDS_R, t)
    a.ds_write_b128(vr, acc.sub(0, 4)); a.ds_write_b128(vr, acc.sub(4, 4), mods='offset:64')
    a('s_waitcnt lgkmcnt(0)\ns_barrier')
    L.shl(vr, k.tid, 2)
    pp = v(8)
    for i in range(8): a.ds_read_b32(pp[i], vr, mods=f'offset:{LDS_R + 2048 * i}')
    a('s_waitcnt lgkmcnt(0)')
    for n in (4, 2, 1):
        for i in range(n): a.v_add_f32(pp[i], pp[i], pp[i + n])
    round_bf16(a, pp[0])
    a.ds_write_b32(vr, pp[0], mods=f'offset:{LDS_S}')
    a('s_waitcnt lgkmcnt(0)\ns_barrier')
    k.stamp(3)
    a.s_cmp_ge_u32(swv, 1); a.s_cbranch_scc1(f'L_{k.name}_end')
    sT, sb = s(), s()
    a.s_lshr_b32(sT, sR, 1); a.s_lshl_b32(sT, sT, 11)
    a.s_and_b32(sb, sR, 1)
    labV = k.lbl('v')
    o = v(8, 4); vo = v()
    a.s_cmp_eq_u32(ssel, 0); a.s_cbranch_scc0(labV)
    rK = k.srd(pws, WS_KF, 131072)
    key = L.and_(vt, lane_, 15); c_ = L.bfe(vt2, lane_, 4, 1); t = L.shl(vr, key, 7); t = L.lshl_add(vr, c_, 6, t)
    h_ = L.shr(vo, lane_, 5); L.lshl_add(vr, h_, 4, t)
    a.ds_read_b128(o.sub(0, 4), vr, mods=f'offset:{LDS_S}'); a.ds_read_b128(o.sub(4, 4), vr, mods=f'offset:{LDS_S + 32}')
    t = L.lshl_add(vo, h_, 5, key); t = L.shl(vo, t, 4); L.lshl_add(vo, c_, 10, t)
    a.s_lshl_b32(sb, sb, 8); a.s_add_u32(sT, sT, sb)
    a('s_waitcnt lgkmcnt(0)')
    q = v(2)
    a.v_mul_f32(q[0], o[0], o[0])
    for j in range(1, 8): a.v_fmac_f32(q[0], o[j], o[j])
    for j in range(4): a.v_cvt_pk_bf16_f32(o[j], o[2 * j], o[2 * j + 1])
    a.buffer_store_dwordx4(o.sub(0, 4), vo, rK, sT, mods='offen')
    a.v_mov_b32(q[1], q[0]); a.v_permlane16_swap_b32(q[0], q[1]); a.v_add_f32(q[0], q[0], q[1])
    a.v_mov_b32(q[1], q[0]); a.v_permlane32_swap_b32(q[0], q[1]); a.v_add_f32(q[0], q[0], q[1])
    for m in ('row_ror:1', 'row_ror:2', 'row_ror:4', 'row_ror:8'):
        a.v_max_f32_dpp(q[0], q[0], q[0], mods=f'{m} row_mask:0xf bank_mask:0xf')
    rKM = k.srd(pws, WS_KM, 512)
    a.s_lshl_b32(sb, sR, 2)
    a.v_mov_b32(vr, 0)
    sv = s(2)
    a.v_cmp_eq_u32('vcc', 0, lane); a.s_and_saveexec_b64(sv, 'vcc')
    a.buffer_store_dword(q[0], vr, rKM, sb, mods='offen')
    a.s_branch(f'L_{k.name}_end')
    a.label(labV)
    rV = k.srd(pws, WS_VF, 131072)
    d_ = L.and_(vt, lane_, 31); h_ = L.shr(vt2, lane_, 5); t = L.shl(vr, d_, 2); L.lshl_add(vr, h_, 9, t)
    for t_ in range(8): a.ds_read_b32(o[t_], vr, mods=f'offset:{LDS_S + (8 * (t_ >> 2) + (t_ & 3)) * 128}')
    L.shl(vo, lane_, 4)
    a.s_lshl_b32(sb, sb, 10); a.s_add_u32(sT, sT, sb)
    a('s_waitcnt lgkmcnt(0)')
    for j in range(4): a.v_cvt_pk_bf16_f32(o[j], o[2 * j], o[2 * j + 1])
    a.buffer_store_dwordx4(o.sub(0, 4), vo, rV, sT, mods='offen')
    return k
```

```python
from gemm import *
from k456 import xcd_tile, roles

SCALE = 32 ** -0.5 * 1.4426950408889634

def gen_k3():
    LDS_Q = 0; QSLOT = 24576; QNS = 4
    LDS_KV = QNS * QSLOT; KVSLOT = 16384; KVNS = 3
    LDS_FLAG = LDS_KV + KVNS * KVSLOT
    k = Kern('k3_attn_kernel', 512, LDS_FLAG + 256, 256)
    a, L, v, s = k.a, k.L, k.v, k.s
    k.exit_if_wg_ge(256)
    k.stamp_init(2)
    pws = k.ptr('ws'); pwq = k.ptr('wq'); pw1 = k.ptr('w1')
    smt, snt = xcd_tile(k, 4, 4, 8)
    lane_, wave_, w4_, swv, sw4 = roles(k)
    vt, vt2, vt3 = v(), v(), v()
    l = L.tid & 63; w = L.tid >> 6
    skg, sng = s(), s()
    a.s_lshr_b32(skg, 's2', 5); a.s_and_b32(sng, 's2', 31)
    vw1, vgk = v(), v()
    r0 = L.shr(vt, k.tid, 4); ch = L.and_(vt2, k.tid, 15); t = L.mul(vw1, 7168, r0); L.lshl_add(vw1, ch, 4, t)
    L.shl(vgk, r0, 2)
    vch = v(); L.mov(vch, ch)
    sw1, sgk = s(), s()
    a.s_mul_i32(sw1, skg, 128 * 7168); a.s_mul_i32('s3', sng, 224); a.s_add_u32(sw1, sw1, 's3')
    a.s_lshl_b32(sgk, skg, 9)
    a('s_waitcnt lgkmcnt(0)')
    rW1 = k.srd(pw1, 0, 1024 * 7168, dyn_off=sw1); a.s_sub_u32(rW1[2], 1024 * 7168, sw1)
    rW1P = k.srd(pws, WS_W1P, 1024 * 7168, dyn_off=sw1); a.s_sub_u32(rW1P[2], 1024 * 7168, sw1)
    rM = k.srd(pws, WS_MOD, 6144 * 4)
    W1 = v(16, 4); GK = v(4); SK = v(4)
    sv = s(2)
    so4 = s(4)
    for i in range(4): a.s_mov_b32(so4[i], 32 * 7168 * i)
    a.v_cmp_gt_u32('vcc', 14, vch); a.s_and_saveexec_b64(sv, 'vcc')
    for i in range(4): a.buffer_load_dwordx4(W1.sub(4 * i, 4), vw1, rW1, so4[i], mods='offen')
    a.s_mov_b64('exec', sv)
    sg2, ssb = s(), s()
    a.s_add_u32(sg2, sgk, 4 * 4096); a.s_add_u32(ssb, sgk, 3 * 4096)
    for i in range(4):
        a.buffer_load_dword(GK[i], vgk, rM, sg2, mods=f'offen offset:{128 * i}')
        a.buffer_load_dword(SK[i], vgk, rM, ssb, mods=f'offen offset:{128 * i}')
    rKM = k.srd(pws, WS_KM, 512)
    KM = v(2, 2); L.shl(vt, lane_, 3)
    a.buffer_load_dwordx2(KM, vt, rKM, 0, mods='offen')
    NPRE = 4 + 8 + 1
    sro, sco = s(), s()
    a.s_lshl_b32(sro, smt, 7 + 11); a.s_lshl_b32(sco, snt, 7)
    rX = k.srd(pws, WS_H1, 128 * 2048, dyn_off=sro)
    rWq = k.srd(pwq, 0, 1024 * 2048, dyn_off=sco); a.s_sub_u32(rWq[2], 1024 * 2048, sco)
    vX = v(2); vW = v()
    r0 = L.shr(vt, lane_, 3); r0 = L.lshl_add(vt, wave_, 3, r0)
    z = L.bfe(vt2, r0, 1, 3); c = L.and_(vt3, lane_, 7); c = L.xor(vt2, c, z)
    b = L.shl(vt, r0, 11); b = L.lshl_add(vX[0], c, 4, b); L.add(vX[1], 64 * 2048, b)
    for j in range(2):
        row = 8 * (8 * j + w) + (l >> 3)
        assert (b.val + 64 * 2048 * j == row * 2048 + (((l & 7) ^ ((row >> 1) & 7)) << 4)).all()
    kk = L.shr(vt, k.tid, 3); pos = L.and_(vt2, k.tid, 7); sw = L.and_(vt3, kk, 2); sw = L.shl(vt3, sw, 1); cc = L.xor(vt2, pos, sw)
    b = L.shl(vt, kk, 11); L.lshl_add(vW, cc, 4, b)
    sKX, sKW, sM, sMend, sw1k = s(), s(), s(), s(), s()
    a.s_lshl_b32(sw1k, swv, 10)
    a.s_add_u32(sM, sw1k, LDS_Q); a.s_add_u32(sMend, sM, QNS * QSLOT)
    a.s_mov_b32(sKX, 0); a.s_mov_b32(sKW, 0)
    def q_issue():
        for j in range(2):
            a.s_add_u32('m0', sM, 8192 * j); a.buffer_load_dwordx4(vX[j], rX, sKX, mods='offen lds')
        a.s_add_u32('m0', sM, 16384); a.buffer_load_dwordx4(vW, rWq, sKW, mods='offen lds')
        a.s_add_u32(sKX, sKX, 128); a.s_add_u32(sKW, sKW, 64 * 2048)
        a.s_add_u32(sM, sM, QSLOT); a.s_cmp_ge_u32(sM, sMend); a.s_cselect_b32('s3', QNS * QSLOT, 0); a.s_sub_u32(sM, sM, 's3')
    for i in range(QNS - 1): q_issue()
    rK = k.srd(pws, WS_KF, 131072); rV = k.srd(pws, WS_VF, 131072)
    vkv = v(); t = L.shl(vkv, k.tid, 4)
    sKV, sKVm = s(), s()
    def kv_issue(slot_sgpr):
        a.s_add_u32('m0', slot_sgpr, sw1k); a.buffer_load_dwordx4(vkv, rK, sKV, mods='offen lds')
        a.s_add_u32('m0', 'm0', 8192); a.buffer_load_dwordx4(vkv, rV, sKV, mods='offen lds')
        a.s_add_u32(sKV, sKV, 8192)
    bX = v(4); bW = v(2)
    qt = L.and_(vt, wave_, 3); r = L.and_(vt2, lane_, 31); row = L.lshl_add(vt, qt, 5, r)
    z = L.bfe(vt2, row, 1, 3); h = L.shr(vt3, lane_, 5)
    for st in range(4):
        c = L.add(bX[st], 2 * st, h); c = L.xor(bX[st], c, z); c = L.shl(bX[st], c, 4); rr = L.lshl_add(bX[st], row, 7, c)
        rw = 32 * (w & 3) + (l & 31)
        assert (rr.val == rw * 128 + (((2 * st + (l >> 5)) ^ ((rw >> 1) & 7)) << 4)).all()
    def waddr(st, half):
        kq = 16 * st + 8 * (l >> 5) + 4 * half + ((l & 15) >> 2)
        nb = 64 * (w >> 2) + 32 * ((l >> 4) & 1) + 8 * (l & 3)
        return 16384 + kq * 128 + (((nb >> 4) ^ (4 * ((kq >> 1) & 1))) << 4) + (nb & 15)
    kq = L.shr(vt, lane_, 5); kq = L.shl(vt, kq, 3); r = L.bfe(vt2, lane_, 2, 2); kq = L.add(vt, kq, r)
    sw = L.and_(vt2, kq, 2); sw = L.shl(vt2, sw, 1)
    hh = L.shr(vt3, wave_, 2); chn = L.shl(vt3, hh, 2)
    x1 = L.bfe(bW[1], lane_, 4, 1); chn = L.lshl_add(vt3, x1, 1, chn); x2 = L.bfe(bW[1], lane_, 1, 1); chn = L.add(vt3, chn, x2)
    chn = L.xor(vt3, chn, sw); b = L.shl(vt, kq, 7); b = L.lshl_add(vt, chn, 4, b); c0 = L.and_(vt2, lane_, 1); b = L.lshl_add(bW[0], c0, 3, b)
    b = L.add(bW[0], 16384, b)
    assert (b.val == waddr(0, 0)).all()
    for st in range(4):
        for half in range(2):
            d = waddr(st, half) - waddr(0, 0); assert (d == d[0]).all() and d[0] == (16 * st + 4 * half) * 128
    aX = v(4); aW = v()
    S = [v(16, 4), v(16, 4)]
    KV32 = v(32, 4)
    fA = KV32.sub(0, 16); fB = KV32.sub(16, 16)
    Kf = [KV32.sub(0, 8), KV32.sub(8, 8)]; Vf = [KV32.sub(16, 8), KV32.sub(24, 8)]
    lo, hi = v(), v()
    for i in range(16): a.v_mov_b32(S[0][i], 0)
    sSlot = s(); a.s_mov_b32(sSlot, LDS_Q)
    sc = s(); a.s_mov_b32(sc, 16)
    lab = k.lbl('qloop')
    a.label(lab)
    a(f's_waitcnt vmcnt({3 * (QNS - 2)})')
    a('s_barrier')
    q_issue()
    for st in range(4): a.v_add_u32(aX[st], sSlot, bX[st])
    a.v_add_u32(aW, sSlot, bW[0])
    for st in range(4):
        a.ds_read_b128(fB.sub(4 * st, 4), aX[st])
        for half in range(2): a.ds_read_b64_tr_b16(fA.sub(4 * st + 2 * half, 2), aW, mods=f'offset:{(16 * st + 4 * half) * 128}')
    for st in range(4):
        a(f's_waitcnt lgkmcnt({3 * (3 - st)})')
        a.v_mfma_f32_32x32x16_bf16(S[0], fA.sub(4 * st, 4), fB.sub(4 * st, 4), S[0])
    a.s_add_u32(sSlot, sSlot, QSLOT); a.s_cmp_ge_u32(sSlot, LDS_Q + QNS * QSLOT); a.s_cselect_b32('s3', QNS * QSLOT, 0); a.s_sub_u32(sSlot, sSlot, 's3')
    a.s_sub_u32(sc, sc, 1); a.s_cmp_lg_u32(sc, 0); a.s_cbranch_scc1(lab)
    k.stamp(1)
    sSlotA, sSlotB = s(), s()
    a.s_mov_b32(sKV, 0)
    a.s_mov_b32(sSlotA, LDS_KV); kv_issue(sSlotA)
    a.s_mov_b32(sSlotB, LDS_KV + KVSLOT); kv_issue(sSlotB)
    a('s_waitcnt vmcnt(4)')
    a('s_barrier')
    mkp = v.mark()
    U = v(24, 4); WP = v(4, 4)
    a.v_cmp_gt_u32('vcc', 14, vch); a.s_and_saveexec_b64(sv, 'vcc')
    for i in range(4):
        for j in range(4):
            unpack_bf16(a, lo, hi, W1[4 * i + j])
            for e, x in ((2 * j, lo), (2 * j + 1, hi)):
                if i == 0:
                    a.v_mov_b32(U[16 + e], x); a.v_mul_f32(U[8 + e], SK[i], x)
                else:
                    a.v_add_f32(U[16 + e], U[16 + e], x); a.v_fmac_f32(U[8 + e], SK[i], x)
            a.v_mul_f32(lo, GK[i], lo); a.v_mul_f32(hi, GK[i], hi)
            a.v_cvt_pk_bf16_f32(WP[j], lo, hi)
            unpack_bf16(a, lo, hi, WP[j])
            if i == 0: a.v_mov_b32(U[2 * j], lo); a.v_mov_b32(U[2 * j + 1], hi)
            else: a.v_add_f32(U[2 * j], U[2 * j], lo); a.v_add_f32(U[2 * j + 1], U[2 * j + 1], hi)
        a.buffer_store_dwordx4(WP, vw1, rW1P, so4[i], mods='offen')
    vu = v(); r0 = L.shr(vt, k.tid, 4); t = L.mul(vu, 1536, r0); a.v_lshl_add_u32(vu, vch, 5, vu)
    for q in range(3):
        a.ds_write_b128(vu, U.sub(8 * q, 4), mods=f'offset:{512 * q}'); a.ds_write_b128(vu, U.sub(8 * q + 4, 4), mods=f'offset:{512 * q + 16}')
    a.s_mov_b64('exec', sv)
    C5 = v(6)
    for i in range(4):
        g_, s_ = GK[i], SK[i]
        if i == 0:
            a.v_mov_b32(C5[0], g_); a.v_mul_f32(C5[1], g_, g_); a.v_mul_f32(C5[2], g_, s_); a.v_mov_b32(C5[3], s_); a.v_mul_f32(C5[4], s_, s_)
        else:
            a.v_add_f32(C5[0], C5[0], g_); a.v_fmac_f32(C5[1], g_, g_); a.v_fmac_f32(C5[2], g_, s_); a.v_add_f32(C5[3], C5[3], s_); a.v_fmac_f32(C5[4], s_, s_)
    vcp = v(); r0 = L.shr(vt, k.tid, 4); t = L.shl(vcp, r0, 5); L.add(vcp, 49152, t)
    a.v_cmp_eq_u32('vcc', 0, vch); a.s_and_saveexec_b64(sv, 'vcc')
    a.v_mov_b32(C5[5], 0)
    a.ds_write_b128(vcp, C5.sub(0, 4) if C5.idx % 2 == 0 else None); a.ds_write_b64(vcp, C5.sub(4, 2), mods='offset:16')
    a.s_mov_b64('exec', sv)
    a('s_waitcnt lgkmcnt(0)\ns_barrier')
    vvec, vcol, vrd = v(), v(), v()
    vec = L.mul(vvec, 586, k.tid); vec = L.shr(vvec, vec, 16); assert (vec.val == L.tid // 112).all()
    t = L.mul(vcol, 112, vec); a.v_sub_u32(vcol, 'v0', vcol); col = L.mk(vcol, L.tid - t.val)
    t = L.shl(vrd, vec, 9); L.lshl_add(vrd, col, 2, t)
    R32 = S[1]; R32b = fA
    labs = k.lbl('skipu')
    a.v_cmp_gt_u32('vcc', 336, 'v0'); a.s_and_saveexec_b64(sv, 'vcc'); a.s_cbranch_execz(labs)
    for i in range(16): a.ds_read_b32(R32[i], vrd, mods=f'offset:{1536 * i}')
    for i in range(16): a.ds_read_b32(R32b[i], vrd, mods=f'offset:{1536 * (16 + i)}')
    a('s_waitcnt lgkmcnt(0)')
    for i in range(16): a.v_add_f32(R32[i], R32[i], R32b[i])
    for n in (8, 4, 2, 1):
        for i in range(n): a.v_add_f32(R32[i], R32[i], R32[i + n])
    rU = k.srd(pws, WS_UP, 8 * 3 * 3584 * 4, dst=rW1)
    su = s(); a.s_mul_i32(su, skg, 3 * 3584 * 4); a.s_mul_i32('s3', sng, 448); a.s_add_u32(su, su, 's3')
    vud = v(); t = L.mul(vud, 3584 * 4, vec); L.lshl_add(vud, col, 2, t)
    a.buffer_store_dword(R32[0], vud, rU, su, mods='offen')
    a.label(labs)
    a.s_mov_b64('exec', sv)
    labc = k.lbl('skipc')
    a.s_cmp_eq_u32(sng, 0); a.s_cbranch_scc0(labc)
    a.s_cmp_eq_u32(swv, 7); a.s_cbranch_scc0(labc)
    L.shl(vrd, lane_, 2)
    a.v_cmp_gt_u32('vcc', 8, lane_.reg); a.s_and_saveexec_b64(sv, 'vcc')
    for i in range(16): a.ds_read_b32(R32[i], vrd, mods=f'offset:{49152 + 32 * i}')
    for i in range(16): a.ds_read_b32(R32b[i], vrd, mods=f'offset:{49152 + 32 * (16 + i)}')
    a('s_waitcnt lgkmcnt(0)')
    for i in range(16): a.v_add_f32(R32[i], R32[i], R32b[i])
    for n in (8, 4, 2, 1):
        for i in range(n): a.v_add_f32(R32[i], R32[i], R32[i + n])
    rS = k.srd(pws, WS_STAT, 2049 * 256, dst=rKM)
    sst = s(); a.s_lshl_b32(sst, skg, 5); a.s_add_u32(sst, sst, 2048 * 256)
    a.buffer_store_dword(R32[0], vrd, rS, sst, mods='offen')
    a.s_mov_b64('exec', sv)
    a.label(labc)
    v.release(mkp)
    k.stamp(2)
    Bq = v(8, 4); negm = v(16, 4); q2 = v(2)
    for i in range(16): a.v_mul_f32(S[0][i], fhex(SCALE), S[0][i])
    for i in range(8): a.v_cvt_pk_bf16_f32(Bq[i], S[0][2 * i], S[0][2 * i + 1])
    for i in range(8):
        unpack_bf16(a, lo, hi, Bq[i])
        if i == 0: a.v_mul_f32(q2[0], lo, lo)
        else: a.v_fmac_f32(q2[0], lo, lo)
        a.v_fmac_f32(q2[0], hi, hi)
    a.v_mov_b32(q2[1], q2[0]); a.v_permlane32_swap_b32(q2[0], q2[1]); a.v_add_f32(q2[0], q2[0], q2[1])
    a.v_max_f32(KM[0], KM[0], KM[1])
    for m in ('row_ror:1', 'row_ror:2', 'row_ror:4', 'row_ror:8'): a.v_max_f32_dpp(KM[0], KM[0], KM[0], mods=f'{m} row_mask:0xf bank_mask:0xf')
    a.v_mov_b32(KM[1], KM[0]); a.v_permlane16_swap_b32(KM[0], KM[1]); a.v_max_f32(KM[0], KM[0], KM[1])
    a.v_mov_b32(KM[1], KM[0]); a.v_permlane32_swap_b32(KM[0], KM[1]); a.v_max_f32(KM[0], KM[0], KM[1])
    a.v_mul_f32(q2[0], q2[0], KM[0]); a.v_sqrt_f32(q2[0], q2[0])
    a.v_mul_f32(q2[0], fhex(-1.002), q2[0])
    for i in range(16): a.v_mov_b32(negm[i], q2[0])
    ones = v(4, 4)
    m_ = L.and_(vt, lane_, 15); g_ = L.bfe(vt2, lane_, 4, 1); mb = L.bfe(vt3, lane_, 2, 1); e = L.xor(vt2, g_, mb)
    m3 = L.and_(vt, lane_, 3); e = L.or_(vt, m3, e)
    a.v_cmp_eq_u32('vcc', 0, vt)
    a.v_mov_b32(vt2, '0x3f803f80')
    a.v_cndmask_b32(ones[0], 0, vt2, 'vcc')
    for i in range(1, 4): a.v_mov_b32(ones[i], ones[0])
    O = v(16, 4); Lc = v(4, 4); Pb = v(8, 4)
    vl16 = v(); L.shl(vl16, lane_, 4)
    aC, aN = v(), v()
    smode = s(); a.s_mov_b32(smode, 0)
    labStart = k.lbl('att')
    a.label(labStart)
    for i in range(16): a.v_mov_b32(O[i], 0)
    for i in range(4): a.v_mov_b32(Lc[i], 0)
    sSlotC = s()
    a.s_mov_b32(sSlotA, LDS_KV); a.s_mov_b32(sSlotB, LDS_KV + KVSLOT); a.s_mov_b32(sSlotC, LDS_KV + 2 * KVSLOT)
    a.v_add_u32(aC, sSlotA, vl16); a.v_add_u32(aN, sSlotB, vl16)
    a('s_waitcnt vmcnt(2)')
    a('s_barrier')
    def rdK(dst, areg, tt):
        return [f'ds_read_b128 {dst.sub(4 * c, 4)}, {areg} offset:{tt * 2048 + c * 1024}' for c in range(2)]
    def rdV(dst, areg, tt):
        return [f'ds_read_b128 {dst.sub(4 * b, 4)}, {areg} offset:{8192 + tt * 2048 + b * 1024}' for b in range(2)]
    for x in rdK(Kf[0], aC, 0) + rdK(Kf[1], aC, 1) + rdV(Vf[0], aC, 0): a(x)
    a('s_waitcnt lgkmcnt(4)')
    a.v_mfma_f32_32x32x16_bf16(S[0], Kf[0].sub(0, 4), Bq.sub(0, 4), negm)
    a.v_mfma_f32_32x32x16_bf16(S[0], Kf[0].sub(4, 4), Bq.sub(4, 4), S[0])
    a.s_mov_b32(sc, 16)
    lab = k.lbl('aloop')
    a.label(lab)
    for tt in range(4):
        cur, nxt = S[tt & 1], S[(tt + 1) & 1]
        Kn = Kf[(tt + 1) & 1]; Vc = Vf[tt & 1]
        a('s_waitcnt lgkmcnt(0)')
        if tt == 2:
            a('s_waitcnt vmcnt(0)')
            a('s_barrier')
            kv_issue(sSlotC)
        rk = rdK(Kf[tt & 1], aC if tt + 2 < 4 else aN, (tt + 2) & 3)
        rv = rdV(Vf[(tt + 1) & 1], aC if tt + 1 < 4 else aN, (tt + 1) & 3)
        def ex(i0):
            for i in range(4): a.v_exp_f32(cur[i0 + i], cur[i0 + i])
            a.v_cvt_pk_bf16_f32(Pb[i0 // 2], cur[i0], cur[i0 + 1]); a.v_cvt_pk_bf16_f32(Pb[i0 // 2 + 1], cur[i0 + 2], cur[i0 + 3])
        a.v_mfma_f32_32x32x16_bf16(nxt, Kn.sub(0, 4), Bq.sub(0, 4), negm)
        a(rv[0]); a(rv[1])
        ex(0)
        a.v_mfma_f32_32x32x16_bf16(nxt, Kn.sub(4, 4), Bq.sub(4, 4), nxt)
        ex(4)
        a(rk[0]); a(rk[1])
        a.v_exp_f32(cur[8], cur[8]); a.v_exp_f32(cur[9], cur[9])
        a.v_mfma_f32_32x32x16_bf16(O, Vc.sub(0, 4), Pb.sub(0, 4), O)
        a.v_exp_f32(cur[10], cur[10]); a.v_exp_f32(cur[11], cur[11])
        a.v_cvt_pk_bf16_f32(Pb[4], cur[8], cur[9]); a.v_cvt_pk_bf16_f32(Pb[5], cur[10], cur[11])
        a.v_mfma_f32_16x16x32_bf16(Lc, ones, Pb.sub(0, 4), Lc)
        ex(12)
        a('s_nop 0')
        a.v_mfma_f32_32x32x16_bf16(O, Vc.sub(4, 4), Pb.sub(4, 4), O)
        a.v_mfma_f32_16x16x32_bf16(Lc, ones, Pb.sub(4, 4), Lc)
    a.s_mov_b32('s3', sSlotA); a.s_mov_b32(sSlotA, sSlotB); a.s_mov_b32(sSlotB, sSlotC); a.s_mov_b32(sSlotC, 's3')
    a.v_mov_b32(aC, aN); a.v_add_u32(aN, sSlotB, vl16)
    a.s_sub_u32(sc, sc, 1); a.s_cmp_lg_u32(sc, 0); a.s_cbranch_scc1(lab)
    k.stamp(3)
    labDone = k.lbl('done'); labFb = k.lbl('fb')
    a.s_cmp_eq_u32(smode, 1); a.s_cbranch_scc1(labDone)
    a.v_mov_b32(vt, fhex(2.0 ** -60))
    a.v_cmp_nge_f32('vcc', Lc[0], vt)
    a.s_cmp_lg_u64('vcc', 0)
    a.s_cselect_b32('s3', 1, 0)
    a.v_mov_b32(vt, 's3'); L.shl(vt2, wave_, 2); a.v_add_u32(vt2, LDS_FLAG, vt2)
    a.ds_write_b32(vt2, vt)
    a('s_waitcnt vmcnt(0) lgkmcnt(0)\ns_barrier')
    a.v_mov_b32(vt2, LDS_FLAG)
    F8 = fA.sub(0, 8)
    a.ds_read_b128(F8.sub(0, 4), vt2); a.ds_read_b128(F8.sub(4, 4), vt2, mods='offset:16')
    a('s_waitcnt lgkmcnt(0)')
    for i in range(1, 8): a.v_or_b32(F8[0], F8[0], F8[i])
    sfl = s(); a.v_readfirstlane_b32(sfl, F8[0])
    a.s_cmp_eq_u32(sfl, 0); a.s_cbranch_scc1(labDone)
    a.s_mov_b32(smode, 1)
    a('s_barrier')
    M = O[0]; a.v_mov_b32(M, '0xff800000')
    a.s_mov_b32(sKV, 0); a.s_mov_b32(sc, 16); a.s_mov_b32(sSlotA, LDS_KV)
    a.v_add_u32(aC, sSlotA, vl16)
    labm = k.lbl('mloop')
    a.label(labm)
    kv_issue(sSlotA)
    a('s_waitcnt vmcnt(0)\ns_barrier')
    for tt in range(4):
        for x in rdK(Kf[0], aC, tt): a(x)
        a('s_waitcnt lgkmcnt(0)')
        a.v_mfma_f32_32x32x16_bf16(S[0], Kf[0].sub(0, 4), Bq.sub(0, 4), 0)
        a.v_mfma_f32_32x32x16_bf16(S[0], Kf[0].sub(4, 4), Bq.sub(4, 4), S[0])
        for i in range(16): a.v_max_f32(M, M, S[0][i])
    a('s_barrier')
    a.s_sub_u32(sc, sc, 1); a.s_cmp_lg_u32(sc, 0); a.s_cbranch_scc1(labm)
    a.v_mov_b32(vt, M); a.v_permlane32_swap_b32(M, vt); a.v_max_f32(M, M, vt)
    a.v_sub_f32(M, 0, M)
    for i in range(16): a.v_mov_b32(negm[i], M)
    a.s_mov_b32(sKV, 0)
    a.s_mov_b32(sSlotA, LDS_KV); kv_issue(sSlotA)
    a.s_mov_b32(sSlotB, LDS_KV + KVSLOT); kv_issue(sSlotB)
    a.s_branch(labStart)
    a.label(labDone)
    a.v_rcp_f32(vt, Lc[0])
    for i in range(16): a.v_mul_f32(O[i], O[i], vt)
    for i in range(8): a.v_cvt_pk_bf16_f32(Pb[i], O[2 * i], O[2 * i + 1])
    for i in (0, 2):
        a.v_permlane32_swap_b32(Pb[2 * i], Pb[2 * i + 2]); a.v_permlane32_swap_b32(Pb[2 * i + 1], Pb[2 * i + 3])
    rO = k.srd(pws, WS_O, 128 * 2048, dyn_off=sro, dst=rX)
    vo = v()
    qt = L.and_(vt, wave_, 3); r = L.and_(vt2, lane_, 31); row = L.lshl_add(vt, qt, 5, r); t = L.shl(vo, row, 11)
    hh = L.shr(vt, wave_, 2); t = L.lshl_add(vo, hh, 6, t); h = L.shr(vt, lane_, 5); L.lshl_add(vo, h, 4, t)
    a.buffer_store_dwordx4(Pb.sub(0, 4), vo, rO, sco, mods='offen'); a.buffer_store_dwordx4(Pb.sub(4, 4), vo, rO, sco, mods='offen offset:32')
    k.stamp(4)
    return k
```

```python
from gemm import *

def xcd_tile(k, px, mx, nx):
    a, s = k.a, k.s
    sx, si, smt, snt = s(), s(), s(), s()
    a.s_and_b32(sx, 's2', 7); a.s_lshr_b32(si, 's2', 3)
    a.s_and_b32(smt, sx, px - 1); a.s_mul_i32(smt, smt, mx); a.s_and_b32('s3', si, mx - 1); a.s_add_u32(smt, smt, 's3')
    a.s_lshr_b32(snt, sx, int(np.log2(px))); a.s_mul_i32(snt, snt, nx); a.s_lshr_b32('s3', si, int(np.log2(mx))); a.s_add_u32(snt, snt, 's3')
    return smt, snt

def roles(k):
    L, v, s = k.L, k.v, k.s
    lane, wv, w4 = v(), v(), v()
    lane_ = L.and_(lane, k.tid, 63); wave_ = L.shr(wv, k.tid, 6); w4_ = L.and_(w4, wave_, 3)
    swv = s(); L.rfl(swv, wave_)
    sw4 = s(); k.a.s_and_b32(sw4, swv, 3)
    return lane_, wave_, w4_, swv, sw4

def dpp_allreduce16(a, regs, op='v_add_f32_dpp'):
    for m in ('row_ror:8', 'row_ror:4', 'row_ror:2', 'row_ror:1'):
        for r in regs: a.emit(op, r, r, r, mods=f'{m} row_mask:0xf bank_mask:0xf')

def gen_proj(which):
    BM, BN = 64, 128
    if which == 'wo':
        name, kidx, K, ldx, NS = 'k4_wo_kernel', 3, 1024, 2048, 6
    else:
        name, kidx, K, ldx, NS = 'k6_g2_kernel', 5, 3584, 7168, 6
    k = Kern(name, 512, NS * (BM * 128 + 64 * BN * 2), 256)
    a, L, v, s = k.a, k.L, k.v, k.s
    k.exit_if_wg_ge(256)
    k.stamp_init(kidx)
    pws = k.ptr('ws'); pw = k.ptr('wo' if which == 'wo' else 'w2'); pres = k.ptr('x') if which == 'wo' else None
    pout = k.ptr('out') if which == 'g2' else None; pb2 = k.ptr('b2') if which == 'g2' else None
    smt, snt = xcd_tile(k, 4, 8, 4)
    lane_, wave_, w4_, swv, sw4 = roles(k)
    G = Gemm(k, BM, BN, 2, 2, K // 64, NS, ldx, 2048)
    vrow, vch, vt = v(), v(), v()
    row_ = L.shr(vrow, k.tid, 4); ch_ = L.and_(vch, k.tid, 15)
    vres = v(); t = L.shl(vres, row_, 11); L.lshl_add(vres, ch_, 4, t)
    vcol = v(); L.shl(vcol, ch_, 5)
    sro, sco, st = s(), s(), s()
    a.s_lshl_b32(sro, smt, 6 + 11)
    a.s_lshl_b32(sco, snt, 8)
    a.s_add_u32(st, sro, sco)
    a('s_waitcnt lgkmcnt(0)')
    if which == 'wo':
        rRes = k.srd(pres, 0, 64 * 2048, dyn_off=st); rDst = k.srd(pws, WS_X1, 64 * 2048, dyn_off=st)
    else:
        rRes = k.srd(pws, WS_X1, 64 * 2048, dyn_off=st); rDst = k.srd(pout, 0, 64 * 2048, dyn_off=st)
    a.s_sub_u32(rRes[2], 64 * 2048, sco); a.s_sub_u32(rDst[2], 64 * 2048, sco)
    rM = k.srd(pws, WS_MOD, 6144 * 4)
    res = v(8, 4)
    s64k = s(); a.s_mov_b32(s64k, 32 * 2048)
    a.buffer_load_dwordx4(res.sub(0, 4), vres, rRes, 0, mods='offen'); a.buffer_load_dwordx4(res.sub(4, 4), vres, rRes, s64k, mods='offen')
    scol = s(); a.s_lshl_b32(scol, snt, 9)
    def loadvec(dst, blk):
        so = s(); a.s_add_u32(so, scol, blk * 4096)
        a.buffer_load_dwordx4(dst.sub(0, 4), vcol, rM, so, mods='offen'); a.buffer_load_dwordx4(dst.sub(4, 4), vcol, rM, so, mods='offen offset:16')
    gate = v(8, 4)
    if which == 'wo':
        g2 = v(8, 4); sbv = v(8, 4)
        loadvec(gate, 2); loadvec(g2, 4); loadvec(sbv, 3)
    else:
        loadvec(gate, 5)
        b2 = v(4, 4); rB = k.srd(pb2, 0, 2048); vb = v(); L.shl(vb, ch_, 4)
        a.buffer_load_dwordx4(b2, vb, rB, sco, mods='offen')
    if which == 'wo':
        rX = k.srd(pws, WS_O, 64 * 2048, dyn_off=sro)
        rW = k.srd(pw, 0, 1024 * 2048, dyn_off=sco); a.s_sub_u32(rW[2], 1024 * 2048, sco)
    else:
        sx = s(); a.s_mul_i32(sx, smt, 64 * 7168)
        rX = k.srd(pws, WS_HH, 64 * 7168, dyn_off=sx)
        rW = k.srd(pw, 0, 3584 * 2048, dyn_off=sco); a.s_sub_u32(rW[2], 3584 * 2048, sco)
    mk = v.mark()
    labL, labE = k.lbl('loader'), k.lbl('epi')
    a.s_cmp_ge_u32(swv, 4); a.s_cbranch_scc1(labL)
    a('s_setprio 1')
    G.consumer_setup(lane_, w4_)
    G.consumer_run()
    k.stamp(1)
    RS = 528
    va, vt2 = v(), v()
    m_ = L.and_(vt, lane_, 15); wm = L.shr(vt2, w4_, 1); r = L.lshl_add(vt, wm, 5, m_); b = L.mul(va, RS, r)
    g16 = L.shr(vt, lane_, 4); b = L.lshl_add(va, g16, 4, b); wn = L.and_(vt2, w4_, 1); L.lshl_add(va, wn, 8, b)
    for m in range(G.mt):
        for t in range(G.nt):
            a.ds_write_b128(va, G.acc.sub(4 * (m * G.nt + t), 4), mods=f'offset:{16 * m * RS + 64 * t}')
    a('s_waitcnt lgkmcnt(0)')
    a.s_branch(labE)
    hi_c = v.hi
    v.release(mk)
    a.label(labL)
    G.loader_setup(lane_, w4_, rX, rW)
    G.loader_run(sw4)
    k.stamp(1)
    a.label(labE)
    v.release(mk)
    a('s_barrier')
    va = v(); f = v(16, 4)
    b = L.mul(va, RS, row_); L.lshl_add(va, ch_, 5, b)
    for p in range(2):
        a.ds_read_b128(f.sub(8 * p, 4), va, mods=f'offset:{32 * p * RS}'); a.ds_read_b128(f.sub(8 * p + 4, 4), va, mods=f'offset:{32 * p * RS + 16}')
    xr = v(16, 2)
    a('s_waitcnt vmcnt(0)')
    for p in range(2):
        for j in range(4): unpack_bf16(a, xr[8 * p + 2 * j], xr[8 * p + 2 * j + 1], res[4 * p + j])
    if which == 'g2':
        bb = v(8)
        for j in range(4): unpack_bf16(a, bb[2 * j], bb[2 * j + 1], b2[j])
    a('s_waitcnt lgkmcnt(0)')
    o = v(8, 4)
    for p in range(2):
        for j in range(8):
            if which == 'g2': a.v_add_f32(f[8 * p + j], f[8 * p + j], bb[j])
            a.v_fma_f32(f[8 * p + j], f[8 * p + j], gate[j], xr[8 * p + j])
        for j in range(4): a.v_cvt_pk_bf16_f32(o[4 * p + j], f[8 * p + 2 * j], f[8 * p + 2 * j + 1])
    a.buffer_store_dwordx4(o.sub(0, 4), vres, rDst, 0, mods='offen'); a.buffer_store_dwordx4(o.sub(4, 4), vres, rDst, s64k, mods='offen')
    if which == 'wo':
        S = v(16, 4)
        zg = v()
        for p in range(2):
            for j in range(4): unpack_bf16(a, xr[8 * p + 2 * j], xr[8 * p + 2 * j + 1], o[4 * p + j])
            Sp = S.sub(8 * p, 8)
            for j in range(8):
                z = xr[8 * p + j]
                a.v_mul_f32(zg, z, g2[j])
                if j == 0:
                    a.v_mov_b32(Sp[0], z); a.v_mul_f32(Sp[1], z, z); a.v_mov_b32(Sp[2], zg); a.v_mul_f32(Sp[3], zg, zg)
                    a.v_mul_f32(Sp[4], zg, g2[j]); a.v_mul_f32(Sp[5], zg, sbv[j])
                else:
                    a.v_add_f32(Sp[0], Sp[0], z); a.v_fmac_f32(Sp[1], z, z); a.v_add_f32(Sp[2], Sp[2], zg); a.v_fmac_f32(Sp[3], zg, zg)
                    a.v_fmac_f32(Sp[4], zg, g2[j]); a.v_fmac_f32(Sp[5], zg, sbv[j])
            a.v_mov_b32(Sp[6], 0); a.v_mov_b32(Sp[7], 0)
        dpp_allreduce16(a, [S[8 * p + i] for p in range(2) for i in range(6)])
        sst = s(); a.s_lshl_b32(sst, smt, 6 + 8); a.s_lshl_b32('s3', snt, 5); a.s_add_u32(sst, sst, 's3')
        rS = k.srd(pws, WS_STAT, 2048 * 256 + 256)
        vs = v(); L.shl(vs, row_, 8)
        sv = s(2)
        a.v_cmp_eq_u32('vcc', 0, vch); a.s_and_saveexec_b64(sv, 'vcc')
        s8k = s(); a.s_add_u32(s8k, sst, 32 * 256)
        a.buffer_store_dwordx4(S.sub(0, 4), vs, rS, sst, mods='offen'); a.buffer_store_dwordx4(S.sub(4, 4), vs, rS, sst, mods='offen offset:16')
        a.buffer_store_dwordx4(S.sub(8, 4), vs, rS, s8k, mods='offen'); a.buffer_store_dwordx4(S.sub(12, 4), vs, rS, s8k, mods='offen offset:16')
        a.s_mov_b64('exec', sv)
    k.stamp(2)
    return k

C1 = -2.0 * 1.4426950408889634 * 0.7978845608028654
C2 = C1 * 0.044715

def gen_g1():
    BM, BN, NS = 128, 224, 3
    SLOT = BM * 128 + 64 * BN * 2
    LDS_RS = NS * SLOT
    LDS_CV = LDS_RS + 2048
    k = Kern('k5_g1_kernel', 512, LDS_CV + 3584, 256)
    a, L, v, s = k.a, k.L, k.v, k.s
    k.exit_if_wg_ge(256)
    k.stamp_init(4)
    pws = k.ptr('ws'); pb1 = k.ptr('b1')
    smt, snt = xcd_tile(k, 2, 8, 4)
    lane_, wave_, w4_, swv, sw4 = roles(k)
    G = Gemm(k, BM, BN, 2, 2, 16, NS, 2048, 7168)
    sro, sco = s(), s()
    a.s_lshl_b32(sro, smt, 7 + 11)
    a.s_mul_i32(sco, snt, 448)
    a('s_waitcnt lgkmcnt(0)')
    rX = k.srd(pws, WS_X1, 128 * 2048, dyn_off=sro)
    rW = k.srd(pws, WS_W1P, 1024 * 7168, dyn_off=sco); a.s_sub_u32(rW[2], 1024 * 7168, sco)
    sh = s(); a.s_mul_i32(sh, smt, 128 * 7168); a.s_add_u32(sh, sh, sco)
    rH = k.srd(pws, WS_HH, 128 * 7168, dyn_off=sh); a.s_sub_u32(rH[2], 128 * 7168, sco)
    mk = v.mark()
    labL, labE = k.lbl('loader'), k.lbl('epi')
    a.s_cmp_ge_u32(swv, 4); a.s_cbranch_scc1(labL)
    a('s_setprio 1')
    G.consumer_setup(lane_, w4_)
    G.consumer_run()
    k.stamp(1)
    RS = 464
    vt, vt2, vr, vc, vh = v(), v(), v(), v(), v()
    m_ = L.and_(vt, lane_, 15); wm = L.shr(vt2, w4_, 1); row = L.lshl_add(vt, wm, 6, m_)
    r = L.shl(vr, row, 4); L.add(vr, LDS_RS, r)
    hb = L.mul(vh, RS, row)
    g16 = L.shr(vt, lane_, 4); wn = L.and_(vt2, w4_, 1); cn = L.mul(vt2, 112, wn); cn = L.lshl_add(vt2, g16, 2, cn)
    c4 = L.shl(vc, cn, 2); L.add(vc, LDS_CV, c4)
    L.lshl_add(vh, cn, 1, hb)
    rs = G.fX[0].sub(0, 16)
    for m in range(4): a.ds_read_b128(rs.sub(4 * m, 4), vr, mods=f'offset:{16 * 16 * m}')
    cv = [G.fW[0].sub(0, 16), G.fW[1].sub(0, 16)]
    def rd_cv(t, dst):
        for q in range(4): a.ds_read_b128(dst.sub(4 * q, 4), vc, mods=f'offset:{896 * q + 64 * t}')
    sC = s(4); a.s_mov_b32(sC[0], fhex(C1)); a.s_mov_b32(sC[1], fhex(C1)); a.s_mov_b32(sC[2], fhex(C2)); a.s_mov_b32(sC[3], fhex(C2))
    T = G.fX[1].sub(0, 16)
    vC2 = v(2); a.v_mov_b32(vC2[0], fhex(C2)); a.v_mov_b32(vC2[1], fhex(C2))
    rd_cv(0, cv[0])
    for t in range(7):
        if t + 1 < 7:
            rd_cv(t + 1, cv[(t + 1) & 1]); a('s_waitcnt lgkmcnt(4)')
        else:
            a('s_waitcnt lgkmcnt(0)')
        c = cv[t & 1]
        for m in range(4):
            acc = G.acc.sub(4 * (m * G.nt + t), 4)
            ab, cd = rs.sub(4 * m, 2), rs.sub(4 * m + 2, 2)
            P = [T.sub(0, 2), T.sub(2, 2)]; Z = [T.sub(4, 2), T.sub(6, 2)]
            for h in range(2):
                u1, u2, u3, b1 = (c.sub(4 * q + 2 * h, 2) for q in range(4))
                a.v_pk_fma_f32(P[h], cd, u3, b1, mods='op_sel:[1,0,0] op_sel_hi:[1,1,1]')
            for h in range(2):
                u1, u2, u3, b1 = (c.sub(4 * q + 2 * h, 2) for q in range(4))
                a.v_pk_fma_f32(P[h], cd, u2, P[h], mods='op_sel:[0,0,0] op_sel_hi:[0,1,1]')
            for h in range(2):
                u1, u2, u3, b1 = (c.sub(4 * q + 2 * h, 2) for q in range(4))
                a.v_pk_fma_f32(P[h], ab, u1, P[h], mods='op_sel:[1,0,0] op_sel_hi:[1,1,1]')
            for h in range(2):
                a.v_pk_fma_f32(P[h], ab, acc.sub(2 * h, 2), P[h], mods='op_sel:[0,0,0] op_sel_hi:[0,1,1]')
            for h in range(2): a.v_pk_mul_f32(Z[h], P[h], P[h])
            for h in range(2): a.v_pk_fma_f32(Z[h], Z[h], vC2, sC.sub(0, 2))
            for h in range(2): a.v_pk_mul_f32(Z[h], Z[h], P[h])
            for h in range(2):
                a.v_exp_f32(Z[h][0], Z[h][0]); a.v_exp_f32(Z[h][1], Z[h][1])
            for h in range(2): a.v_pk_add_f32(Z[h], Z[h], 1.0, mods='op_sel_hi:[1,0]')
            for h in range(2):
                a.v_rcp_f32(Z[h][0], Z[h][0]); a.v_rcp_f32(Z[h][1], Z[h][1])
            for h in range(2): a.v_pk_mul_f32(P[h], P[h], Z[h])
            o = T.sub(8 + 2 * (m & 1), 2)
            a.v_cvt_pk_bf16_f32(o[0], P[0][0], P[0][1]); a.v_cvt_pk_bf16_f32(o[1], P[1][0], P[1][1])
            a.ds_write_b64(vh, o, mods=f'offset:{16 * m * RS + 32 * t}')
    a('s_waitcnt lgkmcnt(0)')
    a.s_branch(labE)
    v.release(mk)
    a.label(labL)
    vt, vt2, vt3 = v(), v(), v()
    lt = L.and_(vt, k.tid, 255)
    vlt = v(); lt = L.mov(vlt, lt)
    rS = k.srd(pws, WS_STAT, 2049 * 256)
    sso = s(); a.s_lshl_b32(sso, smt, 7 + 8)
    vs = v(); L.shl(vs, lt, 7)
    P8 = v(32, 4)
    for i in range(8): a.buffer_load_dwordx4(P8.sub(4 * i, 4), vs, rS, sso, mods=f'offen offset:{16 * i}')
    vz = v(); L.shl(vz, lane_, 2)
    sc0 = s(); a.s_mov_b32(sc0, 2048 * 256)
    CPv = v(2)
    a.buffer_load_dword(CPv[0], vz, rS, sc0, mods='offen')
    rU = k.srd(pws, WS_UP, 8 * 3 * 3584 * 4); rB1 = k.srd(pb1, 0, 7168)
    vq, vvec, vu = v(), v(), v()
    vec = L.mul(vvec, 1171, lt); vec = L.shr(vvec, vec, 16); assert (vec.val == lt.val // 56).all()
    q56 = L.mul(vq, 56, vec); a.v_sub_u32(vq, vlt, vq); quad = L.mk(vq, lt.val - q56.val)
    u = L.mul(vu, 3584 * 4, vec); L.lshl_add(vu, quad, 4, u)
    su = s(); a.s_mul_i32(su, snt, 224 * 4)
    U = v(32, 4)
    sus = s(8)
    for g in range(8):
        a.s_add_u32(sus[g], su, g * 3 * 3584 * 4)
        a.buffer_load_dwordx4(U.sub(4 * g, 4), vu, rU, sus[g], mods='offen')
    vb = v(); L.shl(vb, quad, 3); B1 = v(2, 2)
    a.buffer_load_dwordx2(B1, vb, rB1, sco, mods='offen')
    G.loader_setup(lane_, w4_, rX, rW)
    def pre():
        a(f's_waitcnt vmcnt({min(NS, 16) * G.NI})')
        for n in (4, 2, 1):
            for i in range(n):
                for j in range(4): a.v_add_f32(U[4 * i + j], U[4 * i + j], U[4 * (i + n) + j])
        bf = v(4, 4)
        unpack_bf16(a, bf[0], bf[1], B1[0]); unpack_bf16(a, bf[2], bf[3], B1[1])
        a.v_cmp_eq_u32('vcc', 3, vvec)
        for j in range(4): a.v_cndmask_b32(U[j], U[j], bf[j], 'vcc')
        vw = v(); t = L.mul(vw, 896, vec); t = L.lshl_add(vw, quad, 4, t); L.add(vw, LDS_CV, t)
        sv = s(2)
        a.v_cmp_gt_u32('vcc', 224, vlt); a.s_and_saveexec_b64(sv, 'vcc')
        a.ds_write_b128(vw, U.sub(0, 4))
        a.s_mov_b64('exec', sv)
        inv = fhex(1 / 1024)
        a.v_add_f32_dpp(CPv[0], CPv[0], CPv[0], mods='row_ror:8 row_mask:0xf bank_mask:0xf')
        a.v_mov_b32(CPv[1], CPv[0]); a.v_permlane16_swap_b32(CPv[0], CPv[1]); a.v_add_f32(CPv[0], CPv[0], CPv[1])
        a.v_mov_b32(CPv[1], CPv[0]); a.v_permlane32_swap_b32(CPv[0], CPv[1]); a.v_add_f32(CPv[0], CPv[0], CPv[1])
        a.v_mul_f32(CPv[0], inv, CPv[0])
        CP = s(5)
        for j in range(5): a.v_readlane_b32(CP[j], CPv[0], j)
        mg, mg2, mgs, ms, ms2 = (CP[j] for j in range(5))
        for n in (2, 1):
            for i in range(n):
                for j in range(6): a.v_add_f32(P8[8 * i + j], P8[8 * i + j], P8[8 * (i + n) + j])
        for j in range(6): a.v_add_f32_dpp(P8[j], P8[j], P8[j], mods='quad_perm:[1,0,3,2] row_mask:0xf bank_mask:0xf')
        for j in range(6): a.v_mul_f32(P8[j], inv, P8[j])
        mz, mz2, mzg, mz2g2, mzg2, mzgs = (P8[j] for j in range(6))
        x0, x1, x2, x3, r1, r2, mu2 = (P8[8 + j] for j in range(7))
        eps = fhex(1e-5)
        a.v_fma_f32(x0, mz, mz, mz2, mods=''); a.lines[-1] = f'v_fma_f32 {x0}, -{mz}, {mz}, {mz2}'
        a.v_max_f32(x0, 0, x0)
        a.v_add_f32(x0, eps, x0); a.v_rsq_f32(r1, x0)
        a(f'v_fma_f32 {x1}, -{mz}, {mg}, {mzg}'); a.v_fma_f32(mu2, r1, x1, ms)
        a.v_mul_f32(x1, mz, mg2); a(f'v_fma_f32 {x1}, -2.0, {mzg2}, {x1}'); a.v_fma_f32(x1, x1, mz, mz2g2)
        a.v_mul_f32(x1, x1, r1)
        a(f'v_fma_f32 {x2}, -{mz}, {mgs}, {mzgs}'); a(f'v_fma_f32 {x1}, 2.0, {x2}, {x1}')
        a.v_fma_f32(x1, x1, r1, ms2)
        a(f'v_fma_f32 {x1}, -{mu2}, {mu2}, {x1}'); a.v_max_f32(x1, 0, x1); a.v_add_f32(x1, eps, x1); a.v_rsq_f32(r2, x1)
        o = P8.sub(16, 4)
        a.v_mul_f32(o[0], r1, r2)
        a(f'v_mul_f32 {o[1]}, {mz}, {o[0]}'); a.v_sub_f32(o[1], 0, o[1])
        a.v_mov_b32(o[2], r2)
        a.v_mul_f32(o[3], mu2, r2); a.v_sub_f32(o[3], 0, o[3])
        vw2 = v(); t = L.shr(vw2, lt, 1); t = L.shl(vw2, t, 4); L.add(vw2, LDS_RS, t)
        L.and_(vt, lt, 1)
        a.v_cmp_eq_u32('vcc', 0, vt); a.s_and_saveexec_b64(sv, 'vcc')
        a.ds_write_b128(vw2, o)
        a.s_mov_b64('exec', sv)
        a('s_waitcnt lgkmcnt(0)')
    G.loader_run(sw4, pre_issue=pre)
    k.stamp(1)
    a.label(labE)
    v.release(mk)
    a('s_barrier')
    k.stamp(2)
    RS = 464
    vi, vr_, vc_, vl, vg = v(), v(), v(), v(7), v(7)
    D = v(28, 4)
    for i in range(7):
        idx = L.add(vi, 512 * i, k.tid) if i else L.mov(vi, k.tid)
        r = L.mul(vr_, 9363, idx); r = L.shr(vr_, r, 18); assert (r.val == idx.val // 28).all()
        m28 = L.mul(vc_, 28, r); a.v_sub_u32(vc_, vi, vc_); c = L.mk(vc_, idx.val - m28.val)
        t = L.mul(vl[i], RS, r); L.lshl_add(vl[i], c, 4, t)
        t = L.mul(vg[i], 7168, r); L.lshl_add(vg[i], c, 4, t)
        a.ds_read_b128(D.sub(4 * i, 4), vl[i])
    for i in range(7):
        a(f's_waitcnt lgkmcnt({6 - i})')
        a.buffer_store_dwordx4(D.sub(4 * i, 4), vg[i], rH, 0, mods='offen')
    k.stamp(3)
    return k
```

```python
import numpy as np

class LV:
    def __init__(self, reg, val):
        self.reg = reg; self.val = np.asarray(val, dtype=np.int64)
    def __str__(self): return str(self.reg)

class LaneCtx:
    def __init__(self, asm, nthreads):
        self.a = asm; self.n = nthreads
        self.tid = np.arange(nthreads, dtype=np.int64)
    def _v(self, x):
        if isinstance(x, LV): return x.val
        return np.full(self.n, int(x), dtype=np.int64)
    def _s(self, x):
        if isinstance(x, LV): return str(x.reg)
        x = int(x)
        return str(x) if -16 <= x <= 64 else hex(x & 0xffffffff)
    def _lit(self, x):
        return (not isinstance(x, LV)) and not (-16 <= int(x) <= 64)
    def _issg(self, x):
        return isinstance(x, LV) and x.reg.kind == 's'
    def mk(self, dst, val): return LV(dst, val & 0xffffffff)
    def _vop2(self, op, dst, a, b, fn, comm=True):
        if not (isinstance(b, LV) and b.reg.kind == 'v'):
            assert comm and isinstance(a, LV) and a.reg.kind == 'v', (op, a, b)
            a, b = b, a
        self.a.emit(op, dst, self._s(a), self._s(b))
        return self.mk(dst, fn(self._v(a), self._v(b)))
    def and_(self, dst, a, b): return self._vop2('v_and_b32', dst, a, b, lambda x, y: x & y)
    def or_(self, dst, a, b): return self._vop2('v_or_b32', dst, a, b, lambda x, y: x | y)
    def xor(self, dst, a, b): return self._vop2('v_xor_b32', dst, a, b, lambda x, y: x ^ y)
    def add(self, dst, a, b): return self._vop2('v_add_u32', dst, a, b, lambda x, y: x + y)
    def shl(self, dst, a, sh):
        self.a.emit('v_lshlrev_b32', dst, self._s(sh), self._s(a)); return self.mk(dst, self._v(a) << self._v(sh))
    def shr(self, dst, a, sh):
        self.a.emit('v_lshrrev_b32', dst, self._s(sh), self._s(a)); return self.mk(dst, self._v(a) >> self._v(sh))
    def mul(self, dst, a, b):
        if not (isinstance(b, LV) and b.reg.kind == 'v'): a, b = b, a
        va, vb = self._v(a), self._v(b)
        assert va.max() < (1 << 24) and vb.max() < (1 << 24)
        self.a.emit('v_mul_u32_u24', dst, self._s(a), self._s(b)); return self.mk(dst, va * vb)
    def bfe(self, dst, a, off, w):
        self.a.emit('v_bfe_u32', dst, self._s(a), off, w); return self.mk(dst, (self._v(a) >> off) & ((1 << w) - 1))
    def lshl_add(self, dst, a, sh, b):
        assert not self._lit(b) and not self._lit(a)
        assert not (self._issg(a) and self._issg(b) and a.reg.idx != b.reg.idx)
        self.a.emit('v_lshl_add_u32', dst, self._s(a), sh, self._s(b)); return self.mk(dst, (self._v(a) << sh) + self._v(b))
    def lshl_or(self, dst, a, sh, b):
        assert not self._lit(b) and not self._lit(a)
        self.a.emit('v_lshl_or_b32', dst, self._s(a), sh, self._s(b)); return self.mk(dst, (self._v(a) << sh) | self._v(b))
    def mov(self, dst, a):
        self.a.emit('v_mov_b32', dst, self._s(a)); return self.mk(dst, self._v(a))
    def rfl(self, sdst, a):
        v = self._v(a).reshape(-1, 64)
        assert (v == v[:, :1]).all(), 'not wave uniform'
        self.a.emit('v_readfirstlane_b32', sdst, self._s(a)); return self.mk(sdst, self._v(a))
    def s_op(self, op, dst, a, b, fn):
        self.a.emit(op, dst, self._s(a), self._s(b)); return self.mk(dst, fn(self._v(a), self._v(b)))
    def s_add(self, d, a, b): return self.s_op('s_add_u32', d, a, b, lambda x, y: x + y)
    def s_mul(self, d, a, b): return self.s_op('s_mul_i32', d, a, b, lambda x, y: x * y)
    def s_and(self, d, a, b): return self.s_op('s_and_b32', d, a, b, lambda x, y: x & y)
    def s_shl(self, d, a, b): return self.s_op('s_lshl_b32', d, a, b, lambda x, y: x << y)
    def s_shr(self, d, a, b): return self.s_op('s_lshr_b32', d, a, b, lambda x, y: x >> y)

G128 = [list(range(0, 4)) + list(range(12, 16)) + list(range(20, 28)),
        list(range(4, 12)) + list(range(16, 20)) + list(range(28, 32)),
        list(range(32, 36)) + list(range(44, 48)) + list(range(52, 60)),
        list(range(36, 44)) + list(range(48, 52)) + list(range(60, 64))]
def conflicts(addrs, kind):
    addrs = np.asarray(addrs)
    if kind == 'b128': groups, nb, nbanks = G128, 4, 64
    elif kind in ('b64', 'tr'): groups, nb, nbanks = [list(range(32)), list(range(32, 64))], 2, 64
    elif kind == 'b32': groups, nb, nbanks = [list(range(32)), list(range(32, 64))], 1, 32
    elif kind == 'w128': groups, nb, nbanks = [list(range(8 * i, 8 * i + 8)) for i in range(8)], 4, 32
    elif kind == 'w64': groups, nb, nbanks = [list(range(16 * i, 16 * i + 16)) for i in range(4)], 2, 32
    elif kind == 'w32': groups, nb, nbanks = [list(range(32)), list(range(32, 64))], 1, 32
    extra = 0
    for g in groups:
        banks = {}
        for l in g:
            for d in range(nb):
                dw = addrs[l] // 4 + d
                banks.setdefault(dw % nbanks, set()).add(dw)
        extra += max(len(s) for s in banks.values()) - 1
    return extra
```

```python
import sys
from common import *
from k12 import *
from k456 import *
from k3 import *
ks = []
gens = [gen_k1_full, gen_k2, gen_k3, lambda: gen_proj('wo'), gen_g1, lambda: gen_proj('g2')]
for g in gens:
    k = g(); txt, desc = k.finish(); ks.append((k, txt, desc))
assemble_file(ks, 'adaLN_cond__grouped_kv_mqa__mixer_channel_mlp__prompt.s.ref', 'dev.s')
```

```python
from asmgen import *
from lanes import *
import numpy as np

KA = dict(x=0, wq=8, wk=16, wv=24, wo=32, bx=40, w1=48, b1=56, w2=64, b2=72, c=80, wmod=88, out=96, dbg=104, ws=112)
WS_MOD  = 0x0
WS_MP1  = 0x100000
WS_MP2  = 0x110000
WS_KM   = 0x8000
WS_STAT = 0x10000
WS_KF   = 0x200000
WS_VF   = 0x220000
WS_H1   = 0x400000
WS_O    = 0x800000
WS_X1   = 0xC00000
WS_XG   = 0x1000000
WS_HH   = 0x2000000
WS_DBG  = 0x8000000
WS_SIZE = 268435456

import os
DEBUG_STAMPS = os.environ.get('STAMPS', '0') == '1'

class Kern:
    def __init__(self, name, nthreads, lds, grid, nv=256):
        self.name, self.nthreads, self.lds, self.grid = name, nthreads, lds, grid
        self.a = Asm()
        self.v = Alloc('v', 1, nv)
        self.s = Alloc('s', 4, 100)
        self.L = LaneCtx(self.a, nthreads)
        self.tid = LV(Reg('v', 0), self.L.tid)
        self.uid = 0
    def stamp_init(self, kidx):
        self.dbg = DEBUG_STAMPS
        if not self.dbg: return
        a = self.a
        self.kidx = kidx
        self.st_t = self.s(4); self.st_v = self.v(4, 2)
        a.v_mov_b32(self.st_v[0], 0); a.v_mov_b32(self.st_v[1], 0)
        a.v_lshrrev_b32(self.st_v[2], 6, 'v0')
        self.stamp(0)
    def stamp(self, i):
        if not self.dbg: return
        a = self.a
        a.s_memrealtime(self.st_t.sub(0, 2))
        a.s_memtime(self.st_t.sub(2, 2))
        a('s_waitcnt lgkmcnt(0)')
        a.v_writelane_b32(self.st_v[0], self.st_t[0], i); a.v_writelane_b32(self.st_v[1], self.st_t[2], i)
    def stamp_dyn(self, sidx):
        if not self.dbg: return
        a = self.a
        a.s_memrealtime(self.st_t.sub(0, 2))
        a.s_memtime(self.st_t.sub(2, 2))
        a('s_waitcnt lgkmcnt(0)')
        a.s_mov_b32('m0', sidx)
        a.v_writelane_b32(self.st_v[0], self.st_t[0], 'm0'); a.v_writelane_b32(self.st_v[1], self.st_t[2], 'm0')
    def stamp_flush(self):
        a = self.a
        p = self.st_t
        a.s_mov_b64('exec', -1)
        a.s_load_dwordx2(p.sub(0, 2), 's[0:1]', KA['ws'])
        a('s_waitcnt lgkmcnt(0)')
        r = self.s(4)
        a.s_lshl_b32(r[2], 's2', 11); a.s_add_u32(r[2], r[2], hex(WS_DBG + self.kidx * 0x100000))
        a.s_add_u32(r[0], p[0], r[2]); a.s_addc_u32(r[1], p[1], 0); a.s_mov_b32(r[2], 2048); a.s_mov_b32(r[3], '0x20000')
        a.v_lshlrev_b32(self.st_v[2], 7, self.st_v[2]); a.v_and_b32(self.st_v[3], 63, 'v0'); a.v_lshl_add_u32(self.st_v[2], self.st_v[3], 3, self.st_v[2])
        a.v_cmp_gt_u32('vcc', 16, self.st_v[3]); a.s_and_saveexec_b64(p.sub(2, 2), 'vcc')
        a.buffer_store_dwordx2(self.st_v.sub(0, 2), self.st_v[2], r, 0, mods='offen')
    def lbl(self, base):
        self.uid += 1
        return f"L_{self.name}_{base}_{self.uid}"
    def ptr(self, key):
        r = self.s(2)
        self.a.s_load_dwordx2(r, 's[0:1]', KA[key])
        return r
    def srd(self, ptr, off, nbytes, dyn_off=None, dst=None):
        a = self.a
        r = dst if dst is not None else self.s(4)
        if off == 0 and dyn_off is None:
            a.s_mov_b32(r[0], ptr[0]); a.s_mov_b32(r[1], ptr[1])
        else:
            if off != 0:
                a.s_add_u32(r[0], ptr[0], hex(off)); a.s_addc_u32(r[1], ptr[1], 0)
                if dyn_off is not None:
                    a.s_add_u32(r[0], r[0], dyn_off); a.s_addc_u32(r[1], r[1], 0)
            else:
                a.s_add_u32(r[0], ptr[0], dyn_off); a.s_addc_u32(r[1], ptr[1], 0)
        if isinstance(nbytes, int): a.s_mov_b32(r[2], hex(nbytes))
        else: a.s_mov_b32(r[2], nbytes)
        a.s_mov_b32(r[3], '0x20000')
        return r
    def exit_if_wg_ge(self, n):
        self.a.s_cmp_ge_u32('s2', n)
        self.a.s_cbranch_scc1(f'L_{self.name}_exit')
    def finish(self):
        a = self.a
        a.label(f'L_{self.name}_end')
        if getattr(self, 'dbg', False): self.stamp_flush()
        a.label(f'L_{self.name}_exit')
        a('s_endpgm')
        lines, npad = pad_hazards_fast(a.lines)
        probs = lint_waits(lines, self.name)
        probs += lint_waits(lines, self.name + '(fwd)', take_fwd=lambda t: not (t.endswith('_end') or t.endswith('_exit')))
        for p in probs[:20]: print('LINT', p)
        nv = max(8, (self.v.hi + 7) // 8 * 8)
        ns = self.s.hi
        body = '\n'.join(('  ' + l if not l.endswith(':') else l) for l in lines)
        txt = f'''.globl {self.name}
.p2align 8
.type {self.name},@function
{self.name}:
{body}
'''
        desc = f'''.amdhsa_kernel {self.name}
  .amdhsa_next_free_vgpr {nv}
  .amdhsa_next_free_sgpr {max(ns, 16)}
  .amdhsa_accum_offset {nv}
  .amdhsa_group_segment_fixed_size 0
  .amdhsa_kernarg_size 120
  .amdhsa_user_sgpr_count 2
  .amdhsa_user_sgpr_kernarg_segment_ptr 1
  .amdhsa_system_sgpr_workgroup_id_x 1
  .amdhsa_float_denorm_mode_32 3
  .amdhsa_float_denorm_mode_16_64 3
.end_amdhsa_kernel
'''
        print(f'{self.name}: {len(lines)} lines, vgpr {nv}, sgpr {ns}, pads {npad}, lds {self.lds}')
        return txt, desc

def assemble_file(kerns, header_path, out_path):
    hdr = []
    for ln in open(header_path).read().split('\n'):
        if ln.startswith(';') and '@launch' not in ln and 'Override launch' not in ln and 'grid=ceil' not in ln: hdr.append(ln)
        elif not ln.startswith(';'): break
    s = '\n'.join(hdr) + '\n'
    for k, _, _ in kerns:
        s += f'; @launch kernel={k.name} grid=({k.grid},1,1) block=({k.nthreads},1,1) lds={k.lds}\n'
    s += '.amdgcn_target "amdgcn-amd-amdhsa--gfx950"\n.text\n'
    seen = set()
    for k, txt, _ in kerns:
        if k.name in seen: continue
        seen.add(k.name); s += txt
    s += '.section .rodata,"a"\n'
    seen = set()
    for k, _, desc in kerns:
        if k.name in seen: continue
        seen.add(k.name); s += '.p2align 6\n' + desc
    open(out_path, 'w').write(s)

def wave_sum_dpp(a, regs):
    for mod in ('row_shr:1', 'row_shr:2', 'row_shr:4', 'row_shr:8'):
        for r in regs: a.v_add_f32_dpp(r, r, r, mods=f'{mod} row_mask:0xf bank_mask:0xf bound_ctrl:0')
    for r in regs: a.v_add_f32_dpp(r, r, r, mods='row_bcast:15 row_mask:0xa bank_mask:0xf')
    for r in regs: a.v_add_f32_dpp(r, r, r, mods='row_bcast:31 row_mask:0xc bank_mask:0xf')

def unpack_bf16(a, dst_lo, dst_hi, src):
    a.v_lshlrev_b32(dst_lo, 16, src)
    a.v_and_b32(dst_hi, '0xffff0000', src)
```

```python
from common import *
from k12 import fhex, round_bf16
import os

def w_swz_fn(CH):
    if CH == 28: return lambda k: 2 * ((k >> 3) & 1)
    if CH == 8:  return lambda k: 2 * (((k >> 1) & 1) | (((k >> 3) & 1) << 1))
    if CH == 16: return lambda k: 2 * ((k & 3) + 4 * ((k >> 3) & 1))
    raise ValueError

def emit_w_swz(L, dst, tmp, kv, CH):
    if CH == 28:
        t = L.bfe(dst, kv, 3, 1); return L.shl(dst, t, 1)
    if CH == 8:
        t = L.and_(dst, kv, 2); u = L.bfe(tmp, kv, 3, 1); return L.lshl_or(dst, u, 2, t)
    if CH == 16:
        t = L.and_(dst, kv, 3); u = L.bfe(tmp, kv, 3, 1); t = L.lshl_or(dst, u, 2, t); return L.shl(dst, t, 1)

ABL = os.environ.get('ABL', '')

class Gemm:
    def __init__(self, k, BM, BN, WM, WN, nstage, NS, ldx, ldw, lds0=0):
        self.k = k; self.BM, self.BN, self.WM, self.WN = BM, BN, WM, WN
        self.nstage, self.NS, self.ldx, self.ldw, self.lds0 = nstage, NS, ldx, ldw, lds0
        self.CH = BN // 8
        self.front = 0.8
        self.XB = BM * 128; self.WB = 64 * BN * 2
        self.SLOT = self.XB + self.WB
        self.NX = BM // 8 // 4; self.NW = self.CH // 4; self.NI = self.NX + self.NW
        self.TM, self.TN = BM // WM, BN // WN
        self.mt, self.nt = self.TM // 16, self.TN // 16
        assert WM * WN == 4 and (BM // 8) % 4 == 0 and self.CH % 4 == 0

    def loader_setup(self, lane_, w_, rX, rW):
        k, L, v, s = self.k, self.k.L, self.k.v, self.k.s
        self.rX, self.rW = rX, rW
        t1, t2, t3 = v(), v(), v()
        self.vX = v(self.NX); self.vW = v(self.NW)
        r0 = L.shr(t1, lane_, 3); r0 = L.lshl_add(t1, w_, 3, r0)
        z = L.bfe(t2, r0, 1, 3); c = L.and_(t3, lane_, 7); c = L.xor(t2, c, z)
        b = L.mul(t1, self.ldx, r0); b = L.lshl_add(self.vX[0], c, 4, b)
        for j in range(1, self.NX): L.add(self.vX[j], 32 * j * self.ldx, b)
        l = L.tid & 63; w = w_.val
        for j in range(self.NX):
            row = 8 * (4 * j + w) + (l >> 3)
            ref = row * self.ldx + (((l & 7) ^ ((row >> 1) & 7)) * 16)
            got = b.val + 32 * j * self.ldx
            assert (ref == got).all()
        g = w_swz_fn(self.CH)
        for j in range(self.NW):
            idx = L.lshl_add(t1, w_, 6, lane_)
            if j: idx = L.add(t1, 256 * j, idx)
            if self.CH == 28:
                kk = L.mul(t2, 2341, idx); kk = L.shr(t2, kk, 16)
                assert (kk.val == idx.val // 28).all()
                m = L.mul(t3, 28, kk)
                k.a.v_sub_u32(t3, t1, t3); pos = L.mk(t3, idx.val - m.val)
            else:
                sh = {8: 3, 16: 4}[self.CH]
                kk = L.shr(t2, idx, sh); pos = L.and_(t3, idx, self.CH - 1)
            sw = emit_w_swz(L, t1, self.vW[j], kk, self.CH)
            ch = L.xor(t3, pos, sw)
            b = L.mul(t2, self.ldw, kk); r = L.lshl_add(self.vW[j], ch, 4, b)
            idxr = 64 * (4 * j + w_.val) + l; kr = idxr // self.CH; pr = idxr % self.CH
            ref = kr * self.ldw + ((pr ^ np.array([g(int(x)) for x in kr])) * 16)
            act = (L.tid >> 6) >= 0
            assert (ref == r.val).all()
        self.sKX, self.sKW, self.sM = s(), s(), s()
        self.sW1k = s()

    def loader_issue(self, slot_imm=None):
        a = self.k.a
        for j in range(self.NX if 'nodma' not in ABL else 0):
            a.s_add_u32('m0', self.sM, 4096 * j)
            a.buffer_load_dwordx4(self.vX[j], self.rX, self.sKX, mods='offen lds')
        for j in range(self.NW if 'nodma' not in ABL else 0):
            a.s_add_u32('m0', self.sM, self.XB + 4096 * j)
            a.buffer_load_dwordx4(self.vW[j], self.rW, self.sKW, mods='offen lds')
        a.s_add_u32(self.sKX, self.sKX, 128)
        a.s_add_u32(self.sKW, self.sKW, 64 * self.ldw)
        a.s_add_u32(self.sM, self.sM, self.SLOT)
        a.s_cmp_ge_u32(self.sM, self.sEnd)
        a.s_cselect_b32('s3', self.NS * self.SLOT, 0)
        a.s_sub_u32(self.sM, self.sM, 's3')

    def loader_run(self, sw, kx0=0, kw0=0, pre_issue=None, post=None):
        k, a, s = self.k, self.k.a, self.k.s
        NS, n, NI = self.NS, self.nstage, self.NI
        self.sEnd = s()
        a.s_lshl_b32(self.sM, sw, 10); a.s_add_u32(self.sM, self.sM, self.lds0)
        a.s_add_u32(self.sEnd, self.sM, NS * self.SLOT)
        if isinstance(kx0, int): a.s_mov_b32(self.sKX, kx0)
        else: a.s_mov_b32(self.sKX, kx0)
        if isinstance(kw0, int): a.s_mov_b32(self.sKW, kw0)
        else: a.s_mov_b32(self.sKW, kw0)
        npro = min(NS, n)
        nfirst = getattr(self, 'nfirst', 2)
        if getattr(self, 'pre0', None): self.pre0()
        for i in range(nfirst): self.loader_issue()
        if pre_issue: pre_issue()
        a(f's_waitcnt vmcnt({(nfirst - 1) * NI})')
        a('s_barrier')
        for i in range(nfirst, npro): self.loader_issue()
        if getattr(self, 'mid', None): self.mid()
        nsteady = n - NS
        first = True
        if nsteady > 0:
            sc = s()
            a.s_mov_b32(sc, nsteady)
            lab = k.lbl('ldloop')
            a.label(lab)
            a(f's_waitcnt vmcnt({(NS - 2) * NI})')
            a('s_barrier')
            self.loader_issue()
            a.s_sub_u32(sc, sc, 1)
            a.s_cmp_lg_u32(sc, 0)
            a.s_cbranch_scc1(lab)
        for st in range(max(0, n - NS), n):
            issued_last = n - 1
            rem = max(0, issued_last - (st + 1))
            a(f's_waitcnt vmcnt({rem * NI})')
            a('s_barrier')
        if post: post()

    def consumer_setup(self, lane_, w_):
        k, L, v, s = self.k, self.k.L, self.k.v, self.k.s
        t1, t2, t3 = v(), v(), v()
        WN = self.WN
        l = L.tid & 63
        wv = w_.val
        wm_v, wn_v = wv // WN, wv % WN
        self.bX = v(2)
        m = L.and_(t1, lane_, 15); z = L.bfe(t2, lane_, 1, 3); g16 = L.shr(t3, lane_, 4); c = L.xor(t2, z, g16)
        b = L.shl(self.bX[0], m, 7); b = L.lshl_add(self.bX[0], c, 4, b)
        wm = L.shr(t1, w_, {1: 0, 2: 1, 4: 2}[WN])
        b = L.lshl_add(self.bX[0], wm, int(np.log2(self.TM * 128)), b)
        b1 = L.xor(self.bX[1], b, 64)
        for st, reg in ((0, b), (1, b1)):
            row = wm_v * self.TM + (l & 15)
            ref = row * 128 + (((4 * st + (l >> 4)) ^ ((row >> 1) & 7)) << 4)
            assert (reg.val == ref).all()
        g = w_swz_fn(self.CH); CH = self.CH
        def waddr(st, half, t):
            kk = 32 * st + 8 * (l >> 4) + 4 * half + ((l & 15) >> 2)
            ch = wn_v * (self.TN // 8) + 2 * t + ((l & 3) >> 1)
            gk = np.array([g(int(x)) for x in kk])
            return kk * CH * 16 + ((ch ^ gk) << 4) + (l & 1) * 8
        pats = []
        self.wref = {}
        for st in range(2):
            for half in range(2):
                for t in range(self.nt):
                    ad = waddr(st, half, t)
                    for pi, (rep, arr) in enumerate(pats):
                        dlt = ad - arr
                        if (dlt == dlt[0]).all() and 0 <= dlt[0] < 32768:
                            self.wref[(st, half, t)] = (pi, int(dlt[0])); break
                    else:
                        pats.append(((st, half, t), ad)); self.wref[(st, half, t)] = (len(pats) - 1, 0)
        self.bW = v(len(pats))
        wn = L.and_(t1, w_, WN - 1)
        for pi, ((st, half, t), arr) in enumerate(pats):
            kk = L.shr(t2, lane_, 4); kk = L.shl(t2, kk, 3); r = L.bfe(t3, lane_, 2, 2); kk = L.add(t2, kk, r)
            if 32 * st + 4 * half: kk = L.add(t2, 32 * st + 4 * half, kk)
            sw = emit_w_swz(L, t3, self.bW[pi], kk, CH)
            c1 = L.bfe(self.bW[pi], lane_, 1, 1)
            tw = v()
            ch = L.mul(tw, self.TN // 8, wn); ch = L.add(tw, ch, c1)
            if t: ch = L.add(tw, 2 * t, ch)
            ch = L.xor(t3, ch, sw)
            b = L.mul(t2, CH * 16, kk); b = L.lshl_add(t2, ch, 4, b)
            c0 = L.and_(t3, lane_, 1); r = L.lshl_add(self.bW[pi], c0, 3, b)
            r = L.add(self.bW[pi], self.XB, r)
            assert (r.val - self.XB == arr).all()
        self.npat = len(pats)
        self.aX = v(2); self.aW = v(self.npat)
        self.acc = v(4 * self.mt * self.nt, 4)
        self.fX = [v(4 * self.mt, 4) for _ in range(2)]
        self.fW = [v(4 * self.nt, 4) for _ in range(2)]
        self.sSlot, self.sSlotEnd = s(), s()
        self.ext = None

    def enable_extra(self, vaddr):
        v = self.k.v
        self.vE = vaddr; self.fE = [v(4, 4), v(4, 4)]; self.accE = v(16, 4); self.ext = []

    def _set_addr(self):
        a = self.k.a
        out = []
        for i in range(2): out.append(('v_add_u32', self.aX[i], self.sSlot, self.bX[i]))
        for i in range(self.npat): out.append(('v_add_u32', self.aW[i], self.sSlot, self.bW[i]))
        return out

    def _reads(self, st, setidx):
        out = []
        if 'noread' in ABL: return out
        for m in range(self.mt):
            out.append(f'ds_read_b128 {self.fX[setidx].sub(4 * m, 4)}, {self.aX[st]} offset:{2048 * m}')
        for t in range(self.nt):
            for half in range(2):
                pi, off = self.wref[(st, half, t)]
                out.append(f'ds_read_b64_tr_b16 {self.fW[setidx].sub(4 * t + 2 * half, 2)}, {self.aW[pi]} offset:{off}')
        if self.ext is not None:
            out.append(f'ds_read_b128 {self.fE[setidx]}, {self.vE} offset:{64 * st}')
        return out

    def _mfmas(self, setidx, first=False):
        out = []
        if 'nomfma' in ABL: return ['s_nop 0']
        for t in range(self.nt):
            for m in range(self.mt):
                acc = self.acc.sub(4 * (m * self.nt + t), 4)
                out.append(f'v_mfma_f32_16x16x32_bf16 {acc}, {self.fW[setidx].sub(4 * t, 4)}, {self.fX[setidx].sub(4 * m, 4)}, {0 if first else acc}')
            if self.ext is not None and t in self.ext:
                acc = self.accE.sub(4 * self.ext.index(t), 4)
                out.append(f'v_mfma_f32_16x16x32_bf16 {acc}, {self.fW[setidx].sub(4 * t, 4)}, {self.fE[setidx]}, {acc}')
        return out

    def _interleave(self, mf, others):
        a = self.k.a
        n, m = len(mf), len(others)
        j = 0
        for i, x in enumerate(mf):
            a(x)
            tgt = (i + 1) * m // n if n else m
            tgt = min(m, int(np.ceil((i + 1) * m / (self.front * n))))
            while j < tgt:
                a(others[j]); j += 1
        while j < m:
            a(others[j]); j += 1

    def _adv_slot(self):
        return [f's_add_u32 {self.sSlot}, {self.sSlot}, {self.SLOT}', f's_cmp_ge_u32 {self.sSlot}, {self.sSlotEnd}',
                f's_cselect_b32 s3, {self.NS * self.SLOT}, 0', f's_sub_u32 {self.sSlot}, {self.sSlot}, s3']

    def consumer_run(self):
        k, a, s = self.k, self.k.a, self.k.s
        n = self.nstage
        a.s_mov_b32(self.sSlot, self.lds0); a.s_mov_b32(self.sSlotEnd, self.lds0 + self.NS * self.SLOT)
        for x in self._set_addr(): a.emit(*x)
        for i in range(len(self.acc)): a.v_mov_b32(self.acc[i], 0)
        if self.ext is not None:
            for i in range(16): a.v_mov_b32(self.accE[i], 0)
        k.stamp(7)
        a('s_barrier')
        k.stamp(8)
        for x in self._reads(0, 0): a(x)
        if not hasattr(self, 'sc'): self.sc = s()
        sc = self.sc
        a.s_mov_b32(sc, n)
        lab = k.lbl('cloop')
        a.label(lab)
        a('s_waitcnt lgkmcnt(0)')
        self._interleave(self._mfmas(0), self._reads(1, 1))
        a('s_waitcnt lgkmcnt(0)')
        a('s_barrier')
        adv = self._adv_slot() + [' '.join([x[0], ', '.join(str(y) for y in x[1:])]) for x in self._set_addr()]
        if self.ext is not None: adv.append(f'v_add_u32 {self.vE}, 128, {self.vE}')
        self._interleave(self._mfmas(1), adv + self._reads(0, 0))
        a.s_sub_u32(sc, sc, 1)
        a.s_cmp_lg_u32(sc, 0)
        a.s_cbranch_scc1(lab)
        a('s_waitcnt lgkmcnt(0)')
```

```python
from common import *
import os

LOG2E = 1.4426950408889634
def fhex(x):
    return hex(int(np.float32(x).view(np.uint32)))

def round_bf16(a, r, tmp=None):
    a.v_cvt_pk_bf16_f32(r, r, r)
    a.v_and_b32(r, '0xffff0000', r)

STH = os.environ.get('STH', '')
ST = os.environ.get('ST', 'sc1')

def silu_bf16(a, c, e):
    n = len(c)
    for i in range(n): a.v_lshlrev_b32(c[i], 16, c[i])
    for i in range(n): a.v_mul_f32(e[i], fhex(-LOG2E), c[i])
    for i in range(n): a.v_exp_f32(e[i], e[i])
    for i in range(n): a.v_add_f32(e[i], 1.0, e[i])
    for i in range(n): a.v_rcp_f32(e[i], e[i])
    for i in range(n): a.v_mul_f32(c[i], c[i], e[i])
    for i in range(n): round_bf16(a, c[i])

def gen_k1():
    k = Kern('k1_mod_kernel', 1024, 8192, 256)
    a, L, v, s = k.a, k.L, k.v, k.s
    k.exit_if_wg_ge(256)
    k.stamp_init(0)
    pc = k.ptr('c'); pw = k.ptr('wmod'); pws = k.ptr('ws')
    px = k.ptr('x'); pq = k.ptr('wq'); pk = k.ptr('wk'); pv = k.ptr('wv')
    sx, si, sch, skq = s(), s(), s(), s()
    a.s_lshr_b32(skq, 's2', 6)
    a.s_and_b32(sx, 's2', 7); a.s_lshr_b32(si, 's2', 3); a.s_and_b32(si, si, 7)
    a.s_lshr_b32(sch, si, 1); a.s_lshl_b32(sch, sch, 4); a.s_lshl_b32(sx, sx, 1); a.s_add_u32(sch, sch, sx)
    a.s_and_b32(si, si, 1); a.s_add_u32(sch, sch, si)
    voff, vc, vt = v(), v(), v()
    rg = L.shr(vt, k.tid, 2)
    t1 = L.mul(voff, 12288, rg)
    t2 = L.and_(vc, k.tid, 3)
    L.lshl_add(voff, t2, 4, t1)
    L.shl(vc, rg, 1)
    so, sco = s(), s()
    a.s_mul_i32(so, skq, 256 * 12288); a.s_lshl_b32('s3', sch, 6); a.s_add_u32(so, so, 's3')
    a.s_lshl_b32(sco, skq, 9)
    a('s_waitcnt lgkmcnt(0)')
    rW = k.srd(pw, 0, 1024 * 6144 * 2); rC = k.srd(pc, 0, 2048)
    w = v(4, 4); c = v(1)
    a.buffer_load_dwordx4(w, voff, rW, so, mods='offen')
    a.buffer_load_ushort(c[0], vc, rC, sco, mods='offen')
    vg, vd = v(), v(); A = v(2, 2); B = v(2, 2)
    a.s_mul_i32('s3', 's2', 196); a.v_add_u32(vg, 's3', 'v0')
    sv = s(2)
    a.v_cmp_gt_u32('vcc', 196, 'v0'); a.s_and_saveexec_b64(sv, 'vcc')
    labp = k.lbl('nopf'); a.s_cbranch_execz(labp)
    a.v_mov_b32(A[0], px[0]); a.v_mov_b32(A[1], px[1]); a.v_mov_b32(vd, 0)
    for (pp, start) in ((pq, 32768), (pk, 49152), (pv, 49664)):
        a.v_cmp_le_u32('vcc', start, vg)
        a.v_mov_b32(B[0], pp[0]); a.v_mov_b32(B[1], pp[1])
        a.v_cndmask_b32(A[0], A[0], B[0], 'vcc'); a.v_cndmask_b32(A[1], A[1], B[1], 'vcc')
        a.v_mov_b32(B[0], start); a.v_cndmask_b32(vd, vd, B[0], 'vcc')
    a.v_sub_u32(vg, vg, vd); a.v_lshlrev_b32(vg, 7, vg)
    a.v_add_co_u32(A[0], 'vcc', A[0], vg); a.v_addc_co_u32(A[1], 'vcc', 0, A[1], 'vcc')
    a.global_load_dword(vd, A, 'off')
    a.label(labp)
    a.s_mov_b64('exec', sv)
    acc = v(8, 4); e = v(1); lo, hi = v(), v()
    a('s_waitcnt vmcnt(1)')
    a('s_waitcnt vmcnt(0)') if False else None
    return k, locals()

def gen_k1_full():
    k, d = gen_k1()
    a, L, v, s = k.a, k.L, k.v, k.s
    w, c, acc, e, lo, hi, vt, sch, skq, pws, sv = (d[n] for n in ('w', 'c', 'acc', 'e', 'lo', 'hi', 'vt', 'sch', 'skq', 'pws', 'sv'))
    a.lines.pop()
    sw = s(); a.v_readfirstlane_b32(sw, 'v0')
    labA, labB = k.lbl('wa'), k.lbl('wb')
    a.s_cmp_lt_u32(sw, 196); a.s_cbranch_scc1(labA)
    a('s_waitcnt vmcnt(0)'); a.s_branch(labB)
    a.label(labA); a('s_waitcnt vmcnt(1)')
    a.label(labB)
    silu_bf16(a, [c[0]], e)
    for j in range(4):
        unpack_bf16(a, lo, hi, w[j])
        a.v_mul_f32(acc[2 * j], c[0], lo); a.v_mul_f32(acc[2 * j + 1], c[0], hi)
    for m in ('row_ror:4', 'row_ror:8'):
        for j in range(8): a.v_add_f32_dpp(acc[j], acc[j], acc[j], mods=f'{m} row_mask:0xf bank_mask:0xf')
    va = v()
    t = L.shr(va, k.tid, 4); t = L.shl(va, t, 7)
    t3 = L.and_(vt, k.tid, 3); L.lshl_add(va, t3, 5, t)
    L.and_(vt, k.tid, 15)
    a.v_cmp_gt_u32('vcc', 4, vt)
    a.s_and_saveexec_b64(sv, 'vcc')
    a.ds_write_b128(va, acc.sub(0, 4)); a.ds_write_b128(va, acc.sub(4, 4), mods='offset:16')
    a.s_mov_b64('exec', sv)
    k.stamp(1)
    a('s_waitcnt lgkmcnt(0)\ns_barrier')
    a.s_cmp_ge_u32(sw, 64)
    a.s_cbranch_scc1(f'L_{k.name}_end')
    t = L.and_(va, k.tid, 31); t = L.shl(va, t, 2)
    th = L.bfe(vt, k.tid, 5, 1); L.lshl_add(va, th, 12, t)
    p = v(32)
    for i in range(32): a.ds_read_b32(p[i], va, mods=f'offset:{128 * i}')
    a('s_waitcnt lgkmcnt(0)')
    n = 32
    while n > 1:
        for i in range(n // 2): a.v_add_f32(p[i], p[i], p[i + n // 2])
        n //= 2
    a.v_mov_b32(p[1], p[0])
    a.v_permlane32_swap_b32(p[0], p[1])
    a.v_add_f32(p[0], p[0], p[1])
    rM = k.srd(pws, WS_MP1, 4 * 2048 * 4)
    sb = s(); a.s_lshl_b32(sb, skq, 13); a.s_lshl_b32('s3', sch, 7); a.s_add_u32(sb, sb, 's3')
    t = L.and_(va, k.tid, 31); L.shl(va, t, 2)
    a.v_cmp_gt_u32('vcc', 32, 'v0')
    a.s_and_saveexec_b64(sv, 'vcc')
    a.buffer_store_dword(p[0], va, rM, sb, mods='offen')
    a.s_mov_b64('exec', sv)
    k.stamp(3)
    return k

def gen_k2():
    LDS_R, LDS_S, LDS_H, LDS_W = 0, 16384, 20480, 53248
    LDS_M = 0
    k = Kern("k2_ln_kv_kernel", 512, LDS_W + 65536, 256)
    a, L, v, s = k.a, k.L, k.v, k.s
    k.exit_if_wg_ge(256)
    k.stamp_init(1)
    px = k.ptr('x'); pk = k.ptr('wk'); pv = k.ptr('wv'); pws = k.ptr('ws')
    sR, ssel, st = s(), s(), s()
    a.s_and_b32(sR, 's2', 3); a.s_lshl_b32(sR, sR, 5); a.s_lshr_b32('s3', 's2', 3); a.s_add_u32(sR, sR, 's3')
    a.s_bfe_u32(ssel, 's2', (1 << 16) | 2)
    pq = k.ptr('wq')
    lane, wv, vt, vt2 = v(), v(), v(), v()
    lane_ = L.and_(lane, k.tid, 63); wave_ = L.shr(wv, k.tid, 6)
    swv = s(); swave = L.rfl(swv, wave_)
    vw = v()
    t = L.shr(vt, lane_, 2); t = L.shl(vw, t, 6)
    u = L.shr(vt, lane_, 5); u = L.shl(vt, u, 1); p_ = L.and_(vt2, lane_, 3); u = L.xor(vt, u, p_)
    L.lshl_add(vw, u, 4, t)
    vx = v()
    t = L.shl(vt, wave_, 12); L.lshl_add(vx, lane_, 4, t)
    vm = v(); L.shl(vm, lane_, 5)
    a('s_waitcnt lgkmcnt(0)')
    a.s_cmp_eq_u32(ssel, 0)
    pw = s(2); a.s_cselect_b32(pw[0], pk[0], pv[0]); a.s_cselect_b32(pw[1], pk[1], pv[1])
    rW = k.srd(pw, 0, 65536)
    a.s_lshl_b32(st, sR, 15)
    rX = k.srd(px, 0, 32768, dyn_off=st)
    rH = k.srd(pws, WS_H1, 32768, dyn_off=st)
    rM = k.srd(pws, WS_MP1, 4 * 2048 * 4)
    x = v(16, 4)
    for i in range(2):
        for h in range(2):
            a.buffer_load_dwordx4(x.sub(8 * i + 4 * h, 4), vx, rX, 0, mods=f'offen offset:{2048 * i + 1024 * h}')
    sa = v(16, 4); g = v(16, 4)
    MP = v(16, 4); vmp = v(); L.shl(vmp, k.tid, 4)
    smp = s(4)
    for q in range(4):
        a.s_mov_b32(smp[q], 8192 * q)
        a.buffer_load_dwordx4(MP.sub(4 * q, 4), vmp, rM, smp[q], mods='offen')
    f = v(32, 2)
    k.stamp(4)
    a('s_waitcnt vmcnt(4)')
    k.stamp(5)
    for i in range(2):
        for j in range(8): unpack_bf16(a, f[16 * i + 2 * j], f[16 * i + 2 * j + 1], x[8 * i + j])
    sm_ = v(2); smu = s(2); srs = s(2)
    for i in range(2):
        a.v_add_f32(sm_[i], f[16 * i], f[16 * i + 1])
        for j in range(2, 16): a.v_add_f32(sm_[i], sm_[i], f[16 * i + j])
        a.v_mul_f32(sm_[i], fhex(1 / 1024), sm_[i])
    wave_sum_dpp(a, [sm_[0], sm_[1]])
    for i in range(2): a.v_readlane_b32(smu[i], sm_[i], 63)
    for i in range(2):
        for j in range(16): a.v_subrev_f32(f[16 * i + j], smu[i], f[16 * i + j])
    for i in range(2):
        a.v_mul_f32(sm_[i], f[16 * i], f[16 * i])
        for j in range(1, 16): a.v_fmac_f32(sm_[i], f[16 * i + j], f[16 * i + j])
        a.v_mul_f32(sm_[i], fhex(1 / 1024), sm_[i])
    wave_sum_dpp(a, [sm_[0], sm_[1]])
    for i in range(2): a.v_add_f32(sm_[i], fhex(1e-5), sm_[i])
    for i in range(2): a.v_rsq_f32(sm_[i], sm_[i])
    for i in range(2): a.v_readlane_b32(srs[i], sm_[i], 63)
    sm, so = s(), s()
    a.s_lshl_b32(so, swv, 13)
    for j in range(8):
        a.s_add_u32('m0', so, LDS_W + 1024 * j)
        if j: a.s_add_u32(sm, so, 1024 * j)
        a.buffer_load_dwordx4(vw, rW, sm if j else so, mods='offen lds')
    vq, vqd = v(), v()
    t = L.shr(vq, k.tid, 3); t = L.shl(vq, t, 11); u = L.and_(vqd, k.tid, 7); L.lshl_add(vq, u, 7, t)
    sq = s(); a.s_lshr_b32(sq, 's2', 3); a.s_lshl_b32(sq, sq, 16); a.s_lshl_b32('s3', ssel, 10); a.s_add_u32(sq, sq, 's3')
    rQ = k.srd(pq, 0, 1024 * 2048)
    labq = k.lbl('noq')
    a.s_cmp_ge_u32(swv, 4); a.s_cbranch_scc1(labq)
    a.buffer_load_dword(vqd, vq, rQ, sq, mods='offen')
    a.label(labq)
    NQ = 1
    k.stamp(6)
    a('s_waitcnt vmcnt(8)')
    k.stamp(7)
    for j in range(4):
        a.v_add_f32(MP[j], MP[j], MP[4 + j]); a.v_add_f32(MP[8 + j], MP[8 + j], MP[12 + j]); a.v_add_f32(MP[j], MP[j], MP[8 + j])
        round_bf16(a, MP[j])
    labg = k.lbl('noadd')
    a.s_cmp_ge_u32(swv, 4); a.s_cbranch_scc0(labg)
    for j in range(4):
        a.v_add_f32(MP[j], 1.0, MP[j]); round_bf16(a, MP[j])
    a.label(labg)
    a.ds_write_b128(vmp, MP.sub(0, 4), mods=f'offset:{LDS_M}')
    a('s_waitcnt lgkmcnt(0)\ns_barrier')
    for q, (dst, off) in enumerate(((sa.sub(0, 8), 0), (sa.sub(8, 8), 2048), (g.sub(0, 8), 4096), (g.sub(8, 8), 6144))):
        a.ds_read_b128(dst.sub(0, 4), vm, mods=f'offset:{LDS_M + off}'); a.ds_read_b128(dst.sub(4, 4), vm, mods=f'offset:{LDS_M + off + 16}')
    a('s_waitcnt lgkmcnt(0)')
    for i in range(2):
        for j in range(16):
            a.v_mul_f32(f[16 * i + j], srs[i], f[16 * i + j])
            a.v_fma_f32(f[16 * i + j], f[16 * i + j], g[j], sa[j])
        for j in range(8): a.v_cvt_pk_bf16_f32(x[8 * i + j], f[16 * i + 2 * j], f[16 * i + 2 * j + 1])
    vh = v(2)
    for i in range(2):
        r = L.lshl_add(vt, wave_, 1, i)
        c = L.xor(vt2, lane_, r)
        t = L.shl(vh[i], r, 11); t = L.lshl_add(vh[i], c, 4, t)
        L.add(vh[i], LDS_H, t)
    for i in range(2):
        a.ds_write_b128(vh[i], x.sub(8 * i, 4)); a.ds_write_b128(vh[i], x.sub(8 * i + 4, 4), mods='offset:1024')
    for i in range(2):
        for h in range(2):
            a.buffer_store_dwordx4(x.sub(8 * i + 4 * h, 4), vx, rH, 0, mods=f'offen offset:{2048 * i + 1024 * h} {STH}')
    k.stamp(1)
    a('s_waitcnt vmcnt(0) lgkmcnt(0)\ns_barrier')
    k.stamp(2)
    va = v(2); vb = v()
    g16 = L.shr(vt, lane_, 4)
    kk = L.shl(va[0], g16, 3); r_ = L.bfe(vt2, lane_, 2, 2); kk = L.add(va[0], kk, r_)
    kk = L.lshl_add(va[0], wave_, 7, kk)
    base = L.shl(va[0], kk, 6)
    c1 = L.bfe(vt2, lane_, 1, 1); b3 = L.and_(vt, g16, 1); b3 = L.shl(vt, b3, 1)
    ch0 = L.xor(vt, b3, c1)
    c0 = L.and_(vt2, lane_, 1); c0 = L.shl(vt2, c0, 3)
    t0 = L.lshl_add(va[0], ch0, 4, base); t0 = L.add(va[0], t0, c0)
    t1 = L.xor(va[1], t0, 32)
    for t_, reg in ((0, t0), (1, t1)):
        l = L.tid & 63; w_ = L.tid >> 6
        kref = 128 * w_ + 8 * (l >> 4) + ((l & 15) >> 2)
        ch = (2 * t_ + ((l & 3) >> 1)) ^ (2 * ((kref >> 3) & 1))
        assert (reg.val == kref * 64 + ch * 16 + (l & 1) * 8).all()
    m_ = L.and_(vt, lane_, 15); g16 = L.shr(vt2, lane_, 4)
    ch = L.lshl_add(vb, wave_, 4, g16)
    vbs = v(4)
    for s_ in range(4):
        c_ = L.add(vbs[s_], 4 * s_, ch); c_ = L.xor(vbs[s_], c_, m_)
        c_ = L.shl(vbs[s_], c_, 4); c_ = L.lshl_add(vbs[s_], m_, 11, c_); L.add(vbs[s_], LDS_H, c_)
    A = v(32, 4); B = v(16, 4); acc = v(8, 4)
    for s_ in range(4):
        a.ds_read_b128(B.sub(4 * s_, 4), vbs[s_])
        for t_ in range(2):
            for h in range(2):
                a.ds_read_b64_tr_b16(A.sub(8 * s_ + 4 * t_ + 2 * h, 2), va[t_], mods=f'offset:{LDS_W + (32 * s_ + 4 * h) * 64}')
    a('s_waitcnt lgkmcnt(0)')
    for s_ in range(4):
        for t_ in range(2):
            a.v_mfma_f32_16x16x32_bf16(acc.sub(4 * t_, 4), A.sub(8 * s_ + 4 * t_, 4), B.sub(4 * s_, 4), 0 if s_ == 0 else acc.sub(4 * t_, 4))
    vr = v()
    t = L.shl(vr, wave_, 11); t = L.lshl_add(vr, m_, 7, t); g16 = L.shr(vt2, lane_, 4); t = L.lshl_add(vr, g16, 4, t); L.add(vr, LDS_R, t)
    a.ds_write_b128(vr, acc.sub(0, 4)); a.ds_write_b128(vr, acc.sub(4, 4), mods='offset:64')
    a('s_waitcnt lgkmcnt(0)\ns_barrier')
    L.shl(vr, k.tid, 2)
    pp = v(8)
    for i in range(8): a.ds_read_b32(pp[i], vr, mods=f'offset:{LDS_R + 2048 * i}')
    a('s_waitcnt lgkmcnt(0)')
    for n in (4, 2, 1):
        for i in range(n): a.v_add_f32(pp[i], pp[i], pp[i + n])
    round_bf16(a, pp[0])
    a.ds_write_b32(vr, pp[0], mods=f'offset:{LDS_S}')
    a('s_waitcnt lgkmcnt(0)\ns_barrier')
    k.stamp(3)
    a.s_cmp_ge_u32(swv, 1); a.s_cbranch_scc1(f'L_{k.name}_end')
    sT, sb = s(), s()
    a.s_lshr_b32(sT, sR, 1); a.s_lshl_b32(sT, sT, 11)
    a.s_and_b32(sb, sR, 1)
    labV = k.lbl('v')
    o = v(8, 4); vo = v()
    a.s_cmp_eq_u32(ssel, 0); a.s_cbranch_scc0(labV)
    rK = k.srd(pws, WS_KF, 131072)
    key = L.and_(vt, lane_, 15); c_ = L.bfe(vt2, lane_, 4, 1); t = L.shl(vr, key, 7); t = L.lshl_add(vr, c_, 6, t)
    h_ = L.shr(vo, lane_, 5); L.lshl_add(vr, h_, 4, t)
    a.ds_read_b128(o.sub(0, 4), vr, mods=f'offset:{LDS_S}'); a.ds_read_b128(o.sub(4, 4), vr, mods=f'offset:{LDS_S + 32}')
    t = L.lshl_add(vo, h_, 5, key); t = L.shl(vo, t, 4); L.lshl_add(vo, c_, 10, t)
    a.s_lshl_b32(sb, sb, 8); a.s_add_u32(sT, sT, sb)
    a('s_waitcnt lgkmcnt(0)')
    q = v(2)
    a.v_mul_f32(q[0], o[0], o[0])
    for j in range(1, 8): a.v_fmac_f32(q[0], o[j], o[j])
    for j in range(4): a.v_cvt_pk_bf16_f32(o[j], o[2 * j], o[2 * j + 1])
    a.buffer_store_dwordx4(o.sub(0, 4), vo, rK, sT, mods='offen')
    a.v_mov_b32(q[1], q[0]); a.v_permlane16_swap_b32(q[0], q[1]); a.v_add_f32(q[0], q[0], q[1])
    a.v_mov_b32(q[1], q[0]); a.v_permlane32_swap_b32(q[0], q[1]); a.v_add_f32(q[0], q[0], q[1])
    for m in ('row_ror:1', 'row_ror:2', 'row_ror:4', 'row_ror:8'):
        a.v_max_f32_dpp(q[0], q[0], q[0], mods=f'{m} row_mask:0xf bank_mask:0xf')
    rKM = k.srd(pws, WS_KM, 512)
    a.s_lshl_b32(sb, sR, 2)
    a.v_mov_b32(vr, 0)
    sv = s(2)
    a.v_cmp_eq_u32('vcc', 0, lane); a.s_and_saveexec_b64(sv, 'vcc')
    a.buffer_store_dword(q[0], vr, rKM, sb, mods='offen')
    a.s_branch(f'L_{k.name}_end')
    a.label(labV)
    rV = k.srd(pws, WS_VF, 131072)
    d_ = L.and_(vt, lane_, 31); h_ = L.shr(vt2, lane_, 5); t = L.shl(vr, d_, 2); L.lshl_add(vr, h_, 9, t)
    for t_ in range(8): a.ds_read_b32(o[t_], vr, mods=f'offset:{LDS_S + (8 * (t_ >> 2) + (t_ & 3)) * 128}')
    L.shl(vo, lane_, 4)
    a.s_lshl_b32(sb, sb, 10); a.s_add_u32(sT, sT, sb)
    a('s_waitcnt lgkmcnt(0)')
    for j in range(4): a.v_cvt_pk_bf16_f32(o[j], o[2 * j], o[2 * j + 1])
    a.buffer_store_dwordx4(o.sub(0, 4), vo, rV, sT, mods='offen')
    return k
```

```python
from gemm import *
import os
from k12 import silu_bf16, ST
from k456 import xcd_tile, roles

STO = os.environ.get('STO', '')
SCALE = 32 ** -0.5 * 1.4426950408889634

def gen_k3():
    QSLOT = 24576; QNS = 4; LDS_Q = 0
    CT = 8
    KVSLOT = CT * 4096; NCH = 64 // CT
    KVS = [QNS * QSLOT, QNS * QSLOT + KVSLOT, 0]
    LDS_G = KVSLOT
    k = Kern('k3_attn_kernel', 512, QNS * QSLOT + 2 * KVSLOT, 256)
    a, L, v, s = k.a, k.L, k.v, k.s
    k.exit_if_wg_ge(256)
    k.stamp_init(2)
    pws = k.ptr('ws'); pwq = k.ptr('wq')
    smt, snt = xcd_tile(k, 4, 4, 8)
    lane_, wave_, w4_, swv, sw4 = roles(k)
    vt, vt2, vt3 = v(), v(), v()
    l = L.tid & 63; w = L.tid >> 6
    sro, sco = s(), s()
    a.s_lshl_b32(sro, smt, 7 + 11); a.s_lshl_b32(sco, snt, 7)
    vX = v(2); vW = v()
    r0 = L.shr(vt, lane_, 3); r0 = L.lshl_add(vt, wave_, 3, r0)
    z = L.bfe(vt2, r0, 1, 3); c = L.and_(vt3, lane_, 7); c = L.xor(vt2, c, z)
    b = L.shl(vt, r0, 11); b = L.lshl_add(vX[0], c, 4, b); L.add(vX[1], 64 * 2048, b)
    for j in range(2):
        row = 8 * (8 * j + w) + (l >> 3)
        assert (b.val + 64 * 2048 * j == row * 2048 + (((l & 7) ^ ((row >> 1) & 7)) << 4)).all()
    kk = L.shr(vt, k.tid, 3); pos = L.and_(vt2, k.tid, 7); sw = L.and_(vt3, kk, 2); sw = L.shl(vt3, sw, 1); cc = L.xor(vt2, pos, sw)
    b = L.shl(vt, kk, 11); L.lshl_add(vW, cc, 4, b)
    sKX, sKW, sM, sMend, sw1k = s(), s(), s(), s(), s()
    a.s_lshl_b32(sw1k, swv, 10)
    a.s_add_u32(sM, sw1k, LDS_Q); a.s_add_u32(sMend, sM, QNS * QSLOT)
    a.s_mov_b32(sKX, 0); a.s_mov_b32(sKW, 0)
    a('s_waitcnt lgkmcnt(0)')
    rX = k.srd(pws, WS_H1, 128 * 2048, dyn_off=sro)
    rWq = k.srd(pwq, 0, 1024 * 2048, dyn_off=sco); a.s_sub_u32(rWq[2], 1024 * 2048, sco)
    def q_issue():
        for j in range(2):
            a.s_add_u32('m0', sM, 8192 * j); a.buffer_load_dwordx4(vX[j], rX, sKX, mods='offen lds')
        a.s_add_u32('m0', sM, 16384); a.buffer_load_dwordx4(vW, rWq, sKW, mods='offen lds')
        a.s_add_u32(sKX, sKX, 128); a.s_add_u32(sKW, sKW, 64 * 2048)
        a.s_add_u32(sM, sM, QSLOT); a.s_cmp_ge_u32(sM, sMend); a.s_cselect_b32('s3', QNS * QSLOT, 0); a.s_sub_u32(sM, sM, 's3')
    for i in range(2): q_issue()
    pc = k.ptr('c'); pwm = k.ptr('wmod'); pwo = k.ptr('wo'); pw1 = k.ptr('w1'); pw2 = k.ptr('w2')
    rKM = k.srd(pws, WS_KM, 512)
    KM = v(2, 2); L.shl(vt, lane_, 3)
    a.buffer_load_dwordx2(KM, vt, rKM, 0, mods='offen')
    rK = k.srd(pws, WS_KF, 131072); rV = k.srd(pws, WS_VF, 131072)
    vkv = v(); L.shl(vkv, k.tid, 4)
    sKV = s()
    sKVm, sKVs = s(), s()
    def kv_begin(slot_sgpr):
        a.s_add_u32(sKVm, slot_sgpr, sw1k); a.s_mov_b32(sKVs, sKV); a.s_add_u32(sKV, sKV, CT * 2048)
    def kv_piece(i):
        n = CT // 4
        srd, base, j = (rK, 0, i) if i < n else (rV, CT * 2048, i - n)
        a.s_add_u32('m0', sKVm, base + 8192 * j)
        if j: a.s_add_u32('s3', sKVs, 8192 * j)
        a.buffer_load_dwordx4(vkv, srd, 's3' if j else sKVs, mods='offen lds')
    def kv_issue(slot_sgpr):
        kv_begin(slot_sgpr)
        for i in range(2 * (CT // 4)): kv_piece(i)
    NKV = 2 * (CT // 4)
    bX = v(4); bW = v()
    qt = L.and_(vt, wave_, 3); r = L.and_(vt2, lane_, 31); row = L.lshl_add(vt, qt, 5, r)
    z = L.bfe(vt2, row, 1, 3); h = L.shr(vt3, lane_, 5)
    for st in range(4):
        c = L.add(bX[st], 2 * st, h); c = L.xor(bX[st], c, z); c = L.shl(bX[st], c, 4); rr = L.lshl_add(bX[st], row, 7, c)
        rw = 32 * (w & 3) + (l & 31)
        assert (rr.val == rw * 128 + (((2 * st + (l >> 5)) ^ ((rw >> 1) & 7)) << 4)).all()
    def waddr(st, half):
        kq = 16 * st + 8 * (l >> 5) + 4 * half + ((l & 15) >> 2)
        nb = 64 * (w >> 2) + 32 * ((l >> 4) & 1) + 8 * (l & 3)
        return 16384 + kq * 128 + (((nb >> 4) ^ (4 * ((kq >> 1) & 1))) << 4) + (nb & 15)
    tw = v()
    kq = L.shr(vt, lane_, 5); kq = L.shl(vt, kq, 3); r = L.bfe(vt2, lane_, 2, 2); kq = L.add(vt, kq, r)
    sw = L.and_(vt2, kq, 2); sw = L.shl(vt2, sw, 1)
    hh = L.shr(vt3, wave_, 2); chn = L.shl(vt3, hh, 2)
    x1 = L.bfe(tw, lane_, 4, 1); chn = L.lshl_add(vt3, x1, 1, chn); x2 = L.bfe(tw, lane_, 1, 1); chn = L.add(vt3, chn, x2)
    chn = L.xor(vt3, chn, sw); b = L.shl(vt, kq, 7); b = L.lshl_add(vt, chn, 4, b); c0 = L.and_(vt2, lane_, 1); b = L.lshl_add(bW, c0, 3, b)
    b = L.add(bW, 16384, b)
    assert (b.val == waddr(0, 0)).all()
    aX = v(4); aW = v()
    S = [v(16, 4), v(16, 4)]
    KV32 = v(32, 4)
    Kf = [KV32.sub(0, 8), KV32.sub(8, 8)]; Vf = [KV32.sub(16, 8), KV32.sub(24, 8)]
    O = v(16, 4); negm = v(16, 4)
    fA = [KV32.sub(0, 16), O]; fB = [KV32.sub(16, 16), negm]
    lo, hi = v(), v()
    for i in range(16): a.v_mov_b32(S[0][i], 0)
    sSlot = s(); a.s_mov_b32(sSlot, LDS_Q)
    def q_addr():
        for st in range(4): a.v_add_u32(aX[st], sSlot, bX[st])
        a.v_add_u32(aW, sSlot, bW)
    def q_reads(p):
        for st in range(4):
            a.ds_read_b128(fB[p].sub(4 * st, 4), aX[st])
            for half in range(2): a.ds_read_b64_tr_b16(fA[p].sub(4 * st + 2 * half, 2), aW, mods=f'offset:{(16 * st + 4 * half) * 128}')
    def q_adv():
        a.s_add_u32(sSlot, sSlot, QSLOT); a.s_cmp_ge_u32(sSlot, LDS_Q + QNS * QSLOT); a.s_cselect_b32('s3', QNS * QSLOT, 0); a.s_sub_u32(sSlot, sSlot, 's3')
    def q_mfma(p):
        for st in range(4): a.v_mfma_f32_32x32x16_bf16(S[0], fA[p].sub(4 * st, 4), fB[p].sub(4 * st, 4), S[0])
    q_addr()
    a(f's_waitcnt vmcnt({3 + 1})')
    a('s_barrier')
    k.stamp(5)
    q_reads(0)
    for i in range(QNS - 2): q_issue()
    sc = s(); a.s_mov_b32(sc, 8)
    lab = k.lbl('qloop')
    a.label(lab)
    for p in (0, 1):
        q_adv(); q_addr()
        a(f's_waitcnt vmcnt({3 * (QNS - 2)}) lgkmcnt(0)')
        a('s_barrier')
        q_reads(1 - p)
        q_mfma(p)
        q_issue()
    a.s_sub_u32(sc, sc, 1); a.s_cmp_lg_u32(sc, 0); a.s_cbranch_scc1(lab)
    k.stamp(1)
    sSlotA, sSlotB, sSlotC = s(), s(), s()
    a('s_waitcnt vmcnt(0) lgkmcnt(0)')
    a.s_mov_b32(sKV, 0)
    a.s_mov_b32(sSlotA, KVS[0]); kv_issue(sSlotA)
    a.s_mov_b32(sSlotB, KVS[1]); kv_issue(sSlotB)
    skq, scg = s(), s()
    a.s_lshr_b32(skq, 's2', 6); a.s_and_b32(scg, 's2', 63)
    rWm = k.srd(pwm, 0, 1024 * 12288, dst=rWq); rC = k.srd(pc, 0, 2048, dst=rKM)
    vg, vgc = v(), v()
    rg = L.shr(vt, k.tid, 3); t = L.mul(vg, 12288, rg); c1 = L.and_(vt2, k.tid, 7); L.lshl_add(vg, c1, 4, t); L.shl(vgc, rg, 1)
    GW = v(16, 4); GC = v(4)
    sgo, sgc = s(), s()
    a.s_mul_i32(sgo, skq, 256 * 12288); a.s_lshl_b32('s3', scg, 7); a.s_add_u32(sgo, sgo, 's3'); a.s_add_u32(sgo, sgo, 4096)
    a.s_lshl_b32(sgc, skq, 9)
    for i in range(4): a.buffer_load_ushort(GC[i], vgc, rC, sgc, mods=f'offen offset:{128 * i}')
    vpf, vdum = v(), v()
    t = L.and_(vt, lane_, 7); t = L.lshl_add(vt, wave_, 3, t); L.shl(vpf, t, 7)
    sv = s(2); spf = s(); rP = s(4); rPF = s(4); spo = s()
    a.s_cmp_lt_u32('s2', 32)
    a.s_cselect_b32(rPF[0], pwo[0], pw1[0]); a.s_cselect_b32(rPF[1], pwo[1], pw1[1]); a.s_cselect_b32(spo, 0, 32)
    a.s_cmp_lt_u32('s2', 144)
    a.s_cselect_b32(rPF[0], rPF[0], pw2[0]); a.s_cselect_b32(rPF[1], rPF[1], pw2[1]); a.s_cselect_b32(spo, spo, 144)
    a.s_sub_u32(spo, 's2', spo); a.s_lshl_b32(spo, spo, 16)
    a.s_add_u32(rPF[0], rPF[0], spo); a.s_addc_u32(rPF[1], rPF[1], 0); a.s_mov_b32(rPF[2], 65536); a.s_mov_b32(rPF[3], '0x20000')
    a.s_mov_b32(spo, 0)
    def pf_issue():
        a.s_mov_b64(sv, 'exec'); a.s_mov_b64('exec', 255)
        a.buffer_load_dword(vdum, vpf, rPF, spo, mods='offen')
        a.s_mov_b64('exec', sv)
        a.s_add_u32(spo, spo, 8192)
    def gw_issue(step):
        a.s_add_u32('s3', sgo, hex(64 * 12288 * step)); a.buffer_load_dwordx4(GW.sub(4 * step, 4), vg, rWm, 's3', mods='offen')
    Bq = v(8, 4); q2 = v(2)
    for i in range(16): a.v_mul_f32(S[0][i], fhex(SCALE), S[0][i])
    for i in range(8): a.v_cvt_pk_bf16_f32(Bq[i], S[0][2 * i], S[0][2 * i + 1])
    for i in range(8):
        unpack_bf16(a, lo, hi, Bq[i])
        if i == 0: a.v_mul_f32(q2[0], lo, lo)
        else: a.v_fmac_f32(q2[0], lo, lo)
        a.v_fmac_f32(q2[0], hi, hi)
    a.v_mov_b32(q2[1], q2[0]); a.v_permlane32_swap_b32(q2[0], q2[1]); a.v_add_f32(q2[0], q2[0], q2[1])
    a.v_max_f32(KM[0], KM[0], KM[1])
    for m in ('row_ror:1', 'row_ror:2', 'row_ror:4', 'row_ror:8'): a.v_max_f32_dpp(KM[0], KM[0], KM[0], mods=f'{m} row_mask:0xf bank_mask:0xf')
    a.v_mov_b32(KM[1], KM[0]); a.v_permlane16_swap_b32(KM[0], KM[1]); a.v_max_f32(KM[0], KM[0], KM[1])
    a.v_mov_b32(KM[1], KM[0]); a.v_permlane32_swap_b32(KM[0], KM[1]); a.v_max_f32(KM[0], KM[0], KM[1])
    a.v_mul_f32(q2[0], q2[0], KM[0]); a.v_sqrt_f32(q2[0], q2[0])
    a.v_mul_f32(q2[0], fhex(-1.002), q2[0])
    for i in range(16): a.v_mov_b32(negm[i], q2[0])
    ones = v(4, 4)
    m_ = L.and_(vt, lane_, 15); g_ = L.bfe(vt2, lane_, 4, 1); mb = L.bfe(vt3, lane_, 2, 1); e = L.xor(vt2, g_, mb)
    m3 = L.and_(vt, lane_, 3); e = L.or_(vt, m3, e)
    a.v_cmp_eq_u32('vcc', 0, vt)
    a.v_mov_b32(vt2, '0x3f803f80')
    a.v_cndmask_b32(ones[0], 0, vt2, 'vcc')
    for i in range(1, 4): a.v_mov_b32(ones[i], ones[0])
    Lc = v(4, 4); Pb = v(8, 4)
    vl16 = v(); L.shl(vl16, lane_, 4)
    aC, aN = v(), v()
    k.stamp(2)
    for i in range(16): a.v_mov_b32(O[i], 0)
    for i in range(4): a.v_mov_b32(Lc[i], 0)
    for i in range(4, 8): a.v_mov_b32(Pb[i], 0)
    a.s_mov_b32(sSlotC, KVS[2])
    a.v_add_u32(aC, sSlotA, vl16); a.v_add_u32(aN, sSlotB, vl16)
    pf_issue()
    a(f's_waitcnt vmcnt({NKV + 5})')
    a('s_barrier')
    def rdK(dst, areg, tt):
        return [f'ds_read_b128 {dst.sub(4 * c, 4)}, {areg} offset:{tt * 2048 + c * 1024}' for c in range(2)]
    def rdV(dst, areg, tt):
        return [f'ds_read_b128 {dst.sub(4 * b, 4)}, {areg} offset:{CT * 2048 + tt * 2048 + b * 1024}' for b in range(2)]
    for x in rdK(Kf[0], aC, 0) + rdK(Kf[1], aC, 1) + rdV(Vf[0], aC, 0): a(x)
    for i in range(8): a.v_mov_b32(Vf[1][i], 0)
    a('s_waitcnt lgkmcnt(4)')
    a.v_mfma_f32_32x32x16_bf16(S[0], Kf[0].sub(0, 4), Bq.sub(0, 4), negm)
    a.v_mfma_f32_32x32x16_bf16(S[0], Kf[0].sub(4, 4), Bq.sub(4, 4), S[0])
    a('s_nop 7')
    aS = [aC, aN, v()]
    a.v_add_u32(aS[2], KVS[2], vl16)
    labG = k.lbl('gemv'); labGr = k.lbl('gemvret')
    for c in range(NCH):
        cur_a, nxt_a = aS[c % 3], aS[(c + 1) % 3]
        for tt in range(CT):
            cur, nxt = S[tt & 1], S[(tt + 1) & 1]
            Kn = Kf[(tt + 1) & 1]; Vc = Vf[tt & 1]; Vp = Vf[(tt + 1) & 1]
            a('s_waitcnt lgkmcnt(0)')
            if tt == CT - 2 and c + 1 < NCH:
                nbg = 5 if c == 0 else (2 if c - 1 <= 3 else 1)
                a(f's_waitcnt vmcnt({nbg})')
                a('s_barrier')
                if c + 2 < NCH:
                    a.s_add_u32(sKVm, sw1k, KVS[(c + 2) % 3]); a.s_mov_b32(sKVs, (c + 2) * CT * 2048)
            def bg_point():
                if tt >= CT - 2: p, i = c, tt - (CT - 2)
                else: p, i = c - 1, tt + 2
                if p < 0: return
                if i < 4:
                    if p + 2 < NCH: kv_piece(i)
                elif i == 4:
                    if p <= 3: gw_issue(p)
                elif i == 5:
                    pf_issue()
            rk = rdK(Kf[tt & 1], cur_a if tt + 2 < CT else nxt_a, (tt + 2) % CT)
            rv = rdV(Vp, cur_a if tt + 1 < CT else nxt_a, (tt + 1) % CT)
            E = lambda i: a.v_exp_f32(cur[i], cur[i])
            C = lambda i: a.v_cvt_pk_bf16_f32(Pb[i], cur[2 * i], cur[2 * i + 1])
            a.v_mfma_f32_32x32x16_bf16(nxt, Kn.sub(0, 4), Bq.sub(0, 4), negm)
            a(rk[0]); a(rk[1])
            E(0); E(1); E(2); E(3)
            a.v_mfma_f32_32x32x16_bf16(O, Vp.sub(4, 4), Pb.sub(4, 4), O)
            C(0); C(1); E(4); E(5); E(6)
            a.v_mfma_f32_16x16x32_bf16(Lc, ones, Pb.sub(4, 4), Lc)
            a(rv[0]); a(rv[1])
            E(7); C(2); C(3)
            bg_point()
            a.v_mfma_f32_32x32x16_bf16(nxt, Kn.sub(4, 4), Bq.sub(4, 4), nxt)
            E(8); E(9); E(10)
            a.v_mfma_f32_32x32x16_bf16(O, Vc.sub(0, 4), Pb.sub(0, 4), O)
            E(11); C(4); C(5); E(12); E(13)
            a.v_mfma_f32_16x16x32_bf16(Lc, ones, Pb.sub(0, 4), Lc)
            E(14); E(15); C(6); C(7)
        if os.environ.get('CHST'): k.stamp(7 + c)
        if c == 5:
            a.s_branch(labG)
            a.label(labGr)
    a.v_mfma_f32_32x32x16_bf16(O, Vf[(CT - 1) & 1].sub(4, 4), Pb.sub(4, 4), O)
    a.v_mfma_f32_16x16x32_bf16(Lc, ones, Pb.sub(4, 4), Lc)
    k.stamp(3)
    labDone = k.lbl('done'); labSlow = k.lbl('slow')
    a.v_mov_b32(vt, fhex(2.0 ** -60))
    a('s_nop 7')
    a.v_cmp_nge_f32('vcc', Lc[0], vt)
    a.s_cmp_lg_u64('vcc', 0)
    a.s_cbranch_scc1(labSlow)
    a.label(labDone)
    a.v_rcp_f32(vt, Lc[0])
    for i in range(16): a.v_mul_f32(O[i], O[i], vt)
    for i in range(8): a.v_cvt_pk_bf16_f32(Pb[i], O[2 * i], O[2 * i + 1])
    for i in (0, 2):
        a.v_permlane32_swap_b32(Pb[2 * i], Pb[2 * i + 2]); a.v_permlane32_swap_b32(Pb[2 * i + 1], Pb[2 * i + 3])
    rO = k.srd(pws, WS_O, 128 * 2048, dyn_off=sro, dst=rX)
    vo = v()
    qt = L.and_(vt, wave_, 3); r = L.and_(vt2, lane_, 31); row = L.lshl_add(vt, qt, 5, r); t = L.shl(vo, row, 11)
    hh = L.shr(vt, wave_, 2); t = L.lshl_add(vo, hh, 6, t); h = L.shr(vt, lane_, 5); L.lshl_add(vo, h, 4, t)
    a.buffer_store_dwordx4(Pb.sub(0, 4), vo, rO, sco, mods=f'offen {STO}'); a.buffer_store_dwordx4(Pb.sub(4, 4), vo, rO, sco, mods=f'offen offset:32 {STO}')
    k.stamp(4)
    a.s_branch(f'L_{k.name}_end')
    a.label(labSlow)
    a('s_waitcnt lgkmcnt(0)')
    M = O[0]; a.v_mov_b32(M, '0xff800000')
    sT = s()
    a.s_mov_b32(sT, 0)
    labm = k.lbl('mloop')
    a.label(labm)
    a.buffer_load_dwordx4(Kf[0].sub(0, 4), vl16, rK, sT, mods='offen'); a.buffer_load_dwordx4(Kf[0].sub(4, 4), vl16, rK, sT, mods='offen offset:1024')
    a('s_waitcnt vmcnt(0)')
    a.v_mfma_f32_32x32x16_bf16(S[0], Kf[0].sub(0, 4), Bq.sub(0, 4), 0)
    a.v_mfma_f32_32x32x16_bf16(S[0], Kf[0].sub(4, 4), Bq.sub(4, 4), S[0])
    for i in range(16): a.v_max_f32(M, M, S[0][i])
    a.s_add_u32(sT, sT, 2048); a.s_cmp_lt_u32(sT, 131072); a.s_cbranch_scc1(labm)
    a.v_mov_b32(vt, M); a.v_permlane32_swap_b32(M, vt); a.v_max_f32(M, M, vt)
    a.v_sub_f32(M, 0, M)
    for i in range(16): a.v_mov_b32(negm[i], M)
    for i in range(16): a.v_mov_b32(O[i], 0)
    for i in range(4): a.v_mov_b32(Lc[i], 0)
    a.s_mov_b32(sT, 0)
    labs = k.lbl('sloop')
    a.label(labs)
    a.buffer_load_dwordx4(Kf[0].sub(0, 4), vl16, rK, sT, mods='offen'); a.buffer_load_dwordx4(Kf[0].sub(4, 4), vl16, rK, sT, mods='offen offset:1024')
    a.buffer_load_dwordx4(Vf[0].sub(0, 4), vl16, rV, sT, mods='offen'); a.buffer_load_dwordx4(Vf[0].sub(4, 4), vl16, rV, sT, mods='offen offset:1024')
    a('s_waitcnt vmcnt(0)')
    a.v_mfma_f32_32x32x16_bf16(S[0], Kf[0].sub(0, 4), Bq.sub(0, 4), negm)
    a.v_mfma_f32_32x32x16_bf16(S[0], Kf[0].sub(4, 4), Bq.sub(4, 4), S[0])
    for i in range(16): a.v_exp_f32(S[0][i], S[0][i])
    for i in range(8): a.v_cvt_pk_bf16_f32(Pb[i], S[0][2 * i], S[0][2 * i + 1])
    a.v_mfma_f32_32x32x16_bf16(O, Vf[0].sub(0, 4), Pb.sub(0, 4), O)
    a.v_mfma_f32_32x32x16_bf16(O, Vf[0].sub(4, 4), Pb.sub(4, 4), O)
    a.v_mfma_f32_16x16x32_bf16(Lc, ones, Pb.sub(0, 4), Lc)
    a.v_mfma_f32_16x16x32_bf16(Lc, ones, Pb.sub(4, 4), Lc)
    a.s_add_u32(sT, sT, 2048); a.s_cmp_lt_u32(sT, 131072); a.s_cbranch_scc1(labs)
    a.s_branch(labDone)
    a.label(labG)
    acc = v(8, 4); e4 = v(4)
    silu_bf16(a, [GC[i] for i in range(4)], e4)
    for i in range(4):
        for j in range(4):
            unpack_bf16(a, lo, hi, GW[4 * i + j])
            if i == 0:
                a.v_mul_f32(acc[2 * j], GC[i], lo); a.v_mul_f32(acc[2 * j + 1], GC[i], hi)
            else:
                a.v_fmac_f32(acc[2 * j], GC[i], lo); a.v_fmac_f32(acc[2 * j + 1], GC[i], hi)
    for j in range(8): a.v_add_f32_dpp(acc[j], acc[j], acc[j], mods='row_ror:8 row_mask:0xf bank_mask:0xf')
    va = v()
    t = L.shr(va, k.tid, 4); t = L.shl(va, t, 8); t3 = L.and_(vt, k.tid, 7); t = L.lshl_add(va, t3, 5, t); L.add(va, LDS_G, t)
    L.and_(vt, k.tid, 15)
    a.v_cmp_gt_u32('vcc', 8, vt); a.s_and_saveexec_b64(sv, 'vcc')
    a.ds_write_b128(va, acc.sub(0, 4)); a.ds_write_b128(va, acc.sub(4, 4), mods='offset:16')
    a.s_mov_b64('exec', sv)
    a('s_waitcnt lgkmcnt(0)\ns_barrier')
    a.s_cmp_eq_u32(swv, 0); a.s_cbranch_scc0(labGr)
    t = L.shl(va, lane_, 2); L.add(va, LDS_G, t)
    for i in range(16): a.ds_read_b32(GW[i], va, mods=f'offset:{256 * i}')
    R2 = S[0] if False else None
    for i in range(8): a.ds_read_b32(acc[i], va, mods=f'offset:{256 * (16 + i)}')
    a('s_waitcnt lgkmcnt(0)')
    for i in range(8): a.v_add_f32(GW[i], GW[i], acc[i])
    for i in range(8): a.ds_read_b32(acc[i], va, mods=f'offset:{256 * (24 + i)}')
    a('s_waitcnt lgkmcnt(0)')
    for i in range(8): a.v_add_f32(GW[8 + i], GW[8 + i], acc[i])
    for n in (8, 4, 2, 1):
        for i in range(n): a.v_add_f32(GW[i], GW[i], GW[i + n])
    rM = k.srd(pws, WS_MP2, 4 * 4096 * 4, dst=rP)
    a.s_lshl_b32(spf, skq, 14); a.s_lshl_b32('s3', scg, 8); a.s_add_u32(spf, spf, 's3')
    L.shl(va, lane_, 2)
    a.buffer_store_dword(GW[0], va, rM, spf, mods='offen')
    a.s_branch(labGr)
    return k
```

```python
from gemm import *
from k12 import ST

def xcd_tile(k, px, mx, nx):
    a, s = k.a, k.s
    sx, si, smt, snt = s(), s(), s(), s()
    a.s_and_b32(sx, 's2', 7); a.s_lshr_b32(si, 's2', 3)
    a.s_and_b32(smt, sx, px - 1); a.s_mul_i32(smt, smt, mx); a.s_and_b32('s3', si, mx - 1); a.s_add_u32(smt, smt, 's3')
    a.s_lshr_b32(snt, sx, int(np.log2(px))); a.s_mul_i32(snt, snt, nx); a.s_lshr_b32('s3', si, int(np.log2(mx))); a.s_add_u32(snt, snt, 's3')
    return smt, snt

def roles(k):
    L, v, s = k.L, k.v, k.s
    lane, wv, w4 = v(), v(), v()
    lane_ = L.and_(lane, k.tid, 63); wave_ = L.shr(wv, k.tid, 6); w4_ = L.and_(w4, wave_, 3)
    swv = s(); L.rfl(swv, wave_)
    sw4 = s(); k.a.s_and_b32(sw4, swv, 3)
    return lane_, wave_, w4_, swv, sw4

def dpp_allreduce16(a, regs, op='v_add_f32_dpp'):
    for m in ('row_ror:8', 'row_ror:4', 'row_ror:2', 'row_ror:1'):
        for r in regs: a.emit(op, r, r, r, mods=f'{m} row_mask:0xf bank_mask:0xf')

def gen_proj(which):
    BM, BN = 64, 128
    if which == 'wo':
        name, kidx, K, ldx, NS = 'k4_wo_kernel', 3, 1024, 2048, 6
    else:
        name, kidx, K, ldx, NS = 'k6_g2_kernel', 5, 3584, 7168, 6
    k = Kern(name, 512, NS * (BM * 128 + 64 * BN * 2) + 2048, 256)
    a, L, v, s = k.a, k.L, k.v, k.s
    k.exit_if_wg_ge(256)
    k.stamp_init(kidx)
    pws = k.ptr('ws'); pw = k.ptr('wo' if which == 'wo' else 'w2'); pres = k.ptr('x') if which == 'wo' else None
    pout = k.ptr('out') if which == 'g2' else None; pb2 = k.ptr('b2') if which == 'g2' else None
    smt, snt = xcd_tile(k, 4, 8, 4)
    lane_, wave_, w4_, swv, sw4 = roles(k)
    G = Gemm(k, BM, BN, 2, 2, K // 64, NS, ldx, 2048)
    vrow, vch, vt = v(), v(), v()
    row_ = L.shr(vrow, k.tid, 4); ch_ = L.and_(vch, k.tid, 15)
    vres = v(); t = L.shl(vres, row_, 11); L.lshl_add(vres, ch_, 4, t)
    vcol = v(); L.shl(vcol, ch_, 5)
    sro, sco, st = s(), s(), s()
    a.s_lshl_b32(sro, smt, 6 + 11)
    a.s_lshl_b32(sco, snt, 8)
    a.s_add_u32(st, sro, sco)
    a('s_waitcnt lgkmcnt(0)')
    if which == 'wo':
        rRes = k.srd(pres, 0, 64 * 2048, dyn_off=st); rDst = k.srd(pws, WS_X1, 64 * 2048, dyn_off=st)
    else:
        rRes = k.srd(pws, WS_X1, 64 * 2048, dyn_off=st); rDst = k.srd(pout, 0, 64 * 2048, dyn_off=st)
    a.s_sub_u32(rRes[2], 64 * 2048, sco); a.s_sub_u32(rDst[2], 64 * 2048, sco)
    rM = k.srd(pws, WS_MOD, 6144 * 4)
    res = v(8, 4)
    s64k = s(); a.s_mov_b32(s64k, 32 * 2048)
    a.buffer_load_dwordx4(res.sub(0, 4), vres, rRes, 0, mods='offen'); a.buffer_load_dwordx4(res.sub(4, 4), vres, rRes, s64k, mods='offen')
    scol = s(); a.s_lshl_b32(scol, snt, 9)
    def loadvec(dst, blk):
        so = s(); a.s_add_u32(so, scol, blk * 4096)
        a.buffer_load_dwordx4(dst.sub(0, 4), vcol, rM, so, mods='offen'); a.buffer_load_dwordx4(dst.sub(4, 4), vcol, rM, so, mods='offen offset:16')
    gate = v(8, 4)
    LDS_MV = NS * (BM * 128 + 64 * BN * 2)
    if which == 'wo':
        g2 = v(8, 4); sbv = v(8, 4)
        rP2 = k.srd(pws, WS_MP2, 4 * 4096 * 4)
        vp2, MPv = v(), v(4)
        vec_ = L.shr(vt, k.tid, 7); col_ = L.and_(vp2, k.tid, 127); t = L.shl(vp2, col_, 2); L.lshl_add(vp2, vec_, 12, t)
        sp2 = s(4)
        for q in range(4):
            a.s_add_u32(sp2[q], scol, 16384 * q)
            a.buffer_load_dword(MPv[q], vp2, rP2, sp2[q], mods='offen')
    else:
        loadvec(gate, 5)
        b2 = v(4, 4); rB = k.srd(pb2, 0, 2048); vb = v(); L.shl(vb, ch_, 4)
        a.buffer_load_dwordx4(b2, vb, rB, sco, mods='offen')
    if which == 'wo':
        rX = k.srd(pws, WS_O, 64 * 2048, dyn_off=sro)
        rW = k.srd(pw, 0, 1024 * 2048, dyn_off=sco); a.s_sub_u32(rW[2], 1024 * 2048, sco)
    else:
        sx = s(); a.s_mul_i32(sx, smt, 64 * 7168)
        rX = k.srd(pws, WS_HH, 64 * 7168, dyn_off=sx)
        rW = k.srd(pw, 0, 3584 * 2048, dyn_off=sco); a.s_sub_u32(rW[2], 3584 * 2048, sco)
    mk = v.mark()
    labL, labE = k.lbl('loader'), k.lbl('epi')
    a.s_cmp_ge_u32(swv, 4); a.s_cbranch_scc1(labL)
    a('s_setprio 1')
    G.consumer_setup(lane_, w4_)
    G.consumer_run()
    k.stamp(1)
    RS = 528
    va, vt2 = v(), v()
    m_ = L.and_(vt, lane_, 15); wm = L.shr(vt2, w4_, 1); r = L.lshl_add(vt, wm, 5, m_); b = L.mul(va, RS, r)
    g16 = L.shr(vt, lane_, 4); b = L.lshl_add(va, g16, 4, b); wn = L.and_(vt2, w4_, 1); L.lshl_add(va, wn, 8, b)
    for m in range(G.mt):
        for t in range(G.nt):
            a.ds_write_b128(va, G.acc.sub(4 * (m * G.nt + t), 4), mods=f'offset:{16 * m * RS + 64 * t}')
    a('s_waitcnt lgkmcnt(0)')
    a.s_branch(labE)
    hi_c = v.hi
    v.release(mk)
    a.label(labL)
    G.loader_setup(lane_, w4_, rX, rW)
    G.loader_run(sw4)
    k.stamp(1)
    a.label(labE)
    v.release(mk)
    if which == 'wo':
        a('s_waitcnt vmcnt(0)')
        a.v_add_f32(MPv[0], MPv[0], MPv[1]); a.v_add_f32(MPv[2], MPv[2], MPv[3]); a.v_add_f32(MPv[0], MPv[0], MPv[2])
        round_bf16(a, MPv[0])
        labn = k.lbl('noadd')
        a.s_and_b32('s3', swv, 6); a.s_cmp_eq_u32('s3', 4); a.s_cbranch_scc0(labn)
        a.v_add_f32(MPv[0], 1.0, MPv[0]); round_bf16(a, MPv[0])
        a.label(labn)
        vmv = v(); t = L.shl(vmv, k.tid, 2)
        a.ds_write_b32(vmv, MPv[0], mods=f'offset:{LDS_MV}') if LDS_MV < 65536 else None
        if LDS_MV >= 65536:
            L.add(vmv, LDS_MV, t); a.ds_write_b32(vmv, MPv[0])
        labm = k.lbl('nomod')
        a.s_cmp_eq_u32(smt, 0); a.s_cbranch_scc0(labm)
        a.buffer_store_dword(MPv[0], vp2, rM, sp2[0], mods='offen offset:0') if False else None
        smo = s(); a.s_add_u32(smo, scol, 8192)
        a.buffer_store_dword(MPv[0], vp2, rM, smo, mods='offen')
        a.label(labm)
        a('s_waitcnt lgkmcnt(0)')
    a('s_barrier')
    if which == 'wo':
        vrd = v(); t = L.shl(vrd, ch_, 5); L.add(vrd, LDS_MV, t)
        for dst, vec in ((gate, 0), (sbv, 1), (g2, 2)):
            a.ds_read_b128(dst.sub(0, 4), vrd, mods=f'offset:{512 * vec}'); a.ds_read_b128(dst.sub(4, 4), vrd, mods=f'offset:{512 * vec + 16}')
    va = v(); f = v(16, 4)
    b = L.mul(va, RS, row_); L.lshl_add(va, ch_, 5, b)
    for p in range(2):
        a.ds_read_b128(f.sub(8 * p, 4), va, mods=f'offset:{32 * p * RS}'); a.ds_read_b128(f.sub(8 * p + 4, 4), va, mods=f'offset:{32 * p * RS + 16}')
    xr = v(16, 2)
    a('s_waitcnt vmcnt(0)')
    for p in range(2):
        for j in range(4): unpack_bf16(a, xr[8 * p + 2 * j], xr[8 * p + 2 * j + 1], res[4 * p + j])
    if which == 'g2':
        bb = v(8)
        for j in range(4): unpack_bf16(a, bb[2 * j], bb[2 * j + 1], b2[j])
    a('s_waitcnt lgkmcnt(0)')
    o = v(8, 4)
    for p in range(2):
        for j in range(8):
            if which == 'g2': a.v_add_f32(f[8 * p + j], f[8 * p + j], bb[j])
            a.v_fma_f32(f[8 * p + j], f[8 * p + j], gate[j], xr[8 * p + j])
        for j in range(4): a.v_cvt_pk_bf16_f32(o[4 * p + j], f[8 * p + 2 * j], f[8 * p + 2 * j + 1])
    stp = ST if which == 'wo' else ''
    a.buffer_store_dwordx4(o.sub(0, 4), vres, rDst, 0, mods=f'offen {stp}'); a.buffer_store_dwordx4(o.sub(4, 4), vres, rDst, s64k, mods=f'offen {stp}')
    if which == 'wo':
        S = v(16, 4)
        zg = v(); ZG = v(16, 2); og = v(8, 4)
        rXG = k.srd(pws, WS_XG, 64 * 2048, dyn_off=st); a.s_sub_u32(rXG[2], 64 * 2048, sco)
        for p in range(2):
            for j in range(4): unpack_bf16(a, xr[8 * p + 2 * j], xr[8 * p + 2 * j + 1], o[4 * p + j])
            Sp = S.sub(8 * p, 8)
            for j in range(8):
                z = xr[8 * p + j]
                zg = ZG[8 * p + j]
                a.v_mul_f32(zg, z, g2[j])
                if j == 0:
                    a.v_mov_b32(Sp[0], z); a.v_mul_f32(Sp[1], z, z); a.v_mov_b32(Sp[2], zg); a.v_mul_f32(Sp[3], zg, zg)
                    a.v_mul_f32(Sp[4], zg, g2[j]); a.v_mul_f32(Sp[5], zg, sbv[j])
                else:
                    a.v_add_f32(Sp[0], Sp[0], z); a.v_fmac_f32(Sp[1], z, z); a.v_add_f32(Sp[2], Sp[2], zg); a.v_fmac_f32(Sp[3], zg, zg)
                    a.v_fmac_f32(Sp[4], zg, g2[j]); a.v_fmac_f32(Sp[5], zg, sbv[j])
            a.v_mov_b32(Sp[6], 0); a.v_mov_b32(Sp[7], 0)
            for j in range(4): a.v_cvt_pk_bf16_f32(og[4 * p + j], ZG[8 * p + 2 * j], ZG[8 * p + 2 * j + 1])
        a.buffer_store_dwordx4(og.sub(0, 4), vres, rXG, 0, mods=f'offen {ST}'); a.buffer_store_dwordx4(og.sub(4, 4), vres, rXG, s64k, mods=f'offen {ST}')
        CC = v(8, 4)
        for j in range(8):
            if j == 0:
                a.v_mov_b32(CC[0], g2[j]); a.v_mul_f32(CC[1], g2[j], g2[j]); a.v_mul_f32(CC[2], g2[j], sbv[j]); a.v_mov_b32(CC[3], sbv[j]); a.v_mul_f32(CC[4], sbv[j], sbv[j])
            else:
                a.v_add_f32(CC[0], CC[0], g2[j]); a.v_fmac_f32(CC[1], g2[j], g2[j]); a.v_fmac_f32(CC[2], g2[j], sbv[j]); a.v_add_f32(CC[3], CC[3], sbv[j]); a.v_fmac_f32(CC[4], sbv[j], sbv[j])
        for j in range(5, 8): a.v_mov_b32(CC[j], 0)
        dpp_allreduce16(a, [S[8 * p + i] for p in range(2) for i in range(6)] + [CC[i] for i in range(5)])
        sst = s(); a.s_lshl_b32(sst, smt, 6 + 8); a.s_lshl_b32('s3', snt, 5); a.s_add_u32(sst, sst, 's3')
        rS = k.srd(pws, WS_STAT, 2048 * 256 + 256)
        vs = v(); L.shl(vs, row_, 8)
        sv = s(2)
        a.v_cmp_eq_u32('vcc', 0, vch); a.s_and_saveexec_b64(sv, 'vcc')
        s8k = s(); a.s_add_u32(s8k, sst, 32 * 256)
        a.buffer_store_dwordx4(S.sub(0, 4), vs, rS, sst, mods='offen'); a.buffer_store_dwordx4(S.sub(4, 4), vs, rS, sst, mods='offen offset:16')
        a.buffer_store_dwordx4(S.sub(8, 4), vs, rS, s8k, mods='offen'); a.buffer_store_dwordx4(S.sub(12, 4), vs, rS, s8k, mods='offen offset:16')
        a.s_mov_b64('exec', sv)
        labc = k.lbl('noconst')
        a.s_cmp_eq_u32(smt, 0); a.s_cbranch_scc0(labc)
        a.v_cmp_eq_u32('vcc', 0, 'v0'); a.s_and_saveexec_b64(sv, 'vcc'); a.s_cbranch_execz(labc)
        scc_ = s(); a.s_lshl_b32(scc_, snt, 5); a.s_add_u32(scc_, scc_, 2048 * 256)
        vz = v(); a.v_mov_b32(vz, 0)
        a.buffer_store_dwordx4(CC.sub(0, 4), vz, rS, scc_, mods='offen'); a.buffer_store_dwordx4(CC.sub(4, 4), vz, rS, scc_, mods='offen offset:16')
        a.label(labc)
        a.s_mov_b64('exec', sv)
    k.stamp(2)
    return k

C1 = -2.0 * 1.4426950408889634 * 0.7978845608028654
C2 = C1 * 0.044715

def gen_g1():
    BM, BN, NS = 128, 224, 3
    SLOT = BM * 128 + 64 * BN * 2
    LDS_RS = NS * SLOT
    LDS_CV = LDS_RS + 2048
    LDS_E = LDS_CV + 3584; ERS = 2080
    k = Kern('k5_g1_kernel', 512, LDS_E + 4 * ERS, 256)
    a, L, v, s = k.a, k.L, k.v, k.s
    k.exit_if_wg_ge(256)
    k.stamp_init(4)
    pws = k.ptr('ws'); pb1 = k.ptr('b1'); pw1 = k.ptr('w1')
    smt, snt = xcd_tile(k, 2, 8, 4)
    lane_, wave_, w4_, swv, sw4 = roles(k)
    G = Gemm(k, BM, BN, 2, 2, 16, NS, 2048, 7168)
    sro, sco = s(), s()
    a.s_lshl_b32(sro, smt, 7 + 11)
    a.s_mul_i32(sco, snt, 448)
    mk = v.mark()
    labL, labE = k.lbl('loader'), k.lbl('epi')
    a.s_cmp_ge_u32(swv, 4); a.s_cbranch_scc1(labL)
    a('s_setprio 1')
    G.consumer_setup(lane_, w4_)
    vE, vt, vt2 = v(), v(), v()
    m_ = L.and_(vt, lane_, 15); a.v_min_u32(vt, 3, vt); m3 = L.mk(vt, np.minimum(m_.val, 3)); e = L.mul(vE, ERS, m3)
    g16 = L.shr(vt2, lane_, 4); e = L.lshl_add(vE, g16, 4, e); L.add(vE, LDS_E, e)
    G.enable_extra(vE)
    labW1, labJ = k.lbl('wm1'), k.lbl('join')
    a.s_cmp_ge_u32(sw4, 2); a.s_cbranch_scc1(labW1)
    G.ext = [0, 1, 2, 3]; G.consumer_run()
    vu = v()
    def write_u(tiles):
        sv = s(2)
        m_ = L.and_(vt, lane_, 15); t = L.mul(vu, 896, m_); g16 = L.shr(vt2, lane_, 4); t = L.lshl_add(vu, g16, 4, t)
        wn = L.and_(vt2, w4_, 1); wn = L.mul(vt2, 448, wn); t = L.add(vu, t, wn); L.add(vu, LDS_CV, t)
        a.v_cmp_gt_u32('vcc', 3, vt); a.s_and_saveexec_b64(sv, 'vcc')
        for i, t_ in enumerate(tiles): a.ds_write_b128(vu, G.accE.sub(4 * i, 4), mods=f'offset:{64 * t_}')
        a.s_mov_b64('exec', sv)
    write_u(G.ext)
    a.s_branch(labJ)
    a.label(labW1)
    G.ext = [4, 5, 6]; G.consumer_run()
    write_u(G.ext)
    a.label(labJ)
    k.stamp(1)
    a('s_waitcnt lgkmcnt(0)\ns_barrier')
    RS = 464
    vr, vc, vh = v(), v(), v()
    m_ = L.and_(vt, lane_, 15); wm = L.shr(vt2, w4_, 1); row = L.lshl_add(vt, wm, 6, m_)
    r = L.shl(vr, row, 4); L.add(vr, LDS_RS, r)
    hb = L.mul(vh, RS, row)
    g16 = L.shr(vt, lane_, 4); wn = L.and_(vt2, w4_, 1); cn = L.mul(vt2, 112, wn); cn = L.lshl_add(vt2, g16, 2, cn)
    c4 = L.shl(vc, cn, 2); L.add(vc, LDS_CV, c4)
    L.lshl_add(vh, cn, 1, hb)
    rs = G.fX[0].sub(0, 16)
    for m in range(4): a.ds_read_b128(rs.sub(4 * m, 4), vr, mods=f'offset:{16 * 16 * m}')
    cv = [G.fW[0].sub(0, 16), G.fW[1].sub(0, 16)]
    def rd_cv(t, dst):
        for q in range(4): a.ds_read_b128(dst.sub(4 * q, 4), vc, mods=f'offset:{896 * q + 64 * t}')
    sC = s(4); a.s_mov_b32(sC[0], fhex(C1)); a.s_mov_b32(sC[1], fhex(C1))
    T = G.fX[1].sub(0, 16)
    vC2 = G.fW[0].sub(16, 2); a.v_mov_b32(vC2[0], fhex(C2)); a.v_mov_b32(vC2[1], fhex(C2))
    rd_cv(0, cv[0])
    for t in range(7):
        if t + 1 < 7:
            rd_cv(t + 1, cv[(t + 1) & 1]); a('s_waitcnt lgkmcnt(4)')
        else:
            a('s_waitcnt lgkmcnt(0)')
        c = cv[t & 1]
        for mp in range(2):
            ms = (2 * mp, 2 * mp + 1)
            P = {m: [T.sub(8 * (m & 1), 2), T.sub(8 * (m & 1) + 2, 2)] for m in ms}; Z = {m: [T.sub(8 * (m & 1) + 4, 2), T.sub(8 * (m & 1) + 6, 2)] for m in ms}
            it = [(m, h) for m in ms for h in range(2)]
            U = lambda q, h: c.sub(4 * q + 2 * h, 2)
            ab = lambda m: rs.sub(4 * m, 2); cd = lambda m: rs.sub(4 * m + 2, 2)
            for m, h in it: a.v_pk_fma_f32(P[m][h], cd(m), U(2, h), U(3, h), mods='op_sel:[1,0,0] op_sel_hi:[1,1,1]')
            for m, h in it: a.v_pk_fma_f32(P[m][h], cd(m), U(1, h), P[m][h], mods='op_sel:[0,0,0] op_sel_hi:[0,1,1]')
            for m, h in it: a.v_pk_fma_f32(P[m][h], ab(m), U(0, h), P[m][h], mods='op_sel:[1,0,0] op_sel_hi:[1,1,1]')
            for m, h in it: a.v_pk_fma_f32(P[m][h], ab(m), G.acc.sub(4 * (m * G.nt + t) + 2 * h, 2), P[m][h], mods='op_sel:[0,0,0] op_sel_hi:[0,1,1]')
            for m, h in it: a.v_pk_mul_f32(Z[m][h], P[m][h], P[m][h])
            for m, h in it: a.v_pk_fma_f32(Z[m][h], Z[m][h], vC2, sC.sub(0, 2))
            for m, h in it: a.v_pk_mul_f32(Z[m][h], Z[m][h], P[m][h])
            for m, h in it:
                a.v_exp_f32(Z[m][h][0], Z[m][h][0]); a.v_exp_f32(Z[m][h][1], Z[m][h][1])
            for m, h in it: a.v_pk_add_f32(Z[m][h], Z[m][h], 1.0, mods='op_sel_hi:[1,0]')
            for m, h in it:
                a.v_rcp_f32(Z[m][h][0], Z[m][h][0]); a.v_rcp_f32(Z[m][h][1], Z[m][h][1])
            for m, h in it: a.v_pk_mul_f32(P[m][h], P[m][h], Z[m][h])
            for m in ms:
                o = Z[m][0]
                a.v_cvt_pk_bf16_f32(o[0], P[m][0][0], P[m][0][1]); a.v_cvt_pk_bf16_f32(o[1], P[m][1][0], P[m][1][1])
            for m in ms: a.ds_write_b64(vh, Z[m][0], mods=f'offset:{16 * m * RS + 32 * t}')
    a('s_waitcnt lgkmcnt(0)')
    a.s_branch(labE)
    v.release(mk)
    a.label(labL)
    vt, vt2, vt3 = v(), v(), v()
    lt = L.and_(vt, k.tid, 255)
    vlt = v(); lt = L.mov(vlt, lt)
    v16 = v(); L.shl(v16, lt, 4)
    G.loader_setup(lane_, w4_, None, None)
    a('s_waitcnt lgkmcnt(0)')
    rX = k.srd(pws, WS_XG, 128 * 2048, dyn_off=sro)
    rW = k.srd(pw1, 0, 1024 * 7168, dyn_off=sco); a.s_sub_u32(rW[2], 1024 * 7168, sco)
    G.rX, G.rW = rX, rW
    rM = k.srd(pws, WS_MOD, 6144 * 4)
    GV = v(4, 4); SV = v(4, 4)
    sg, ss = s(), s(); a.s_mov_b32(sg, 4 * 4096); a.s_mov_b32(ss, 3 * 4096)
    rS = k.srd(pws, WS_STAT, 2049 * 256)
    sso = s(); a.s_lshl_b32(sso, smt, 7 + 8)
    vs = v(); L.shl(vs, lt, 7)
    P8 = v(32, 4)
    vz = v(); L.shl(vz, lane_, 2)
    sc0 = s(); a.s_mov_b32(sc0, 2048 * 256)
    CPv = v(2)
    rB1 = k.srd(pb1, 0, 7168)
    vb = v(); L.shl(vb, lt, 3); B1 = v(2, 2)
    k.stamp(4)
    def pre0():
        a.buffer_load_dwordx4(GV, v16, rM, sg, mods='offen'); a.buffer_load_dwordx4(SV, v16, rM, ss, mods='offen')
    def pre():
        k.stamp(5)
        a(f's_waitcnt vmcnt({2 * G.NI})')
        E2 = v(8, 2)
        a.v_cvt_pk_bf16_f32(E2[0], GV[0], GV[1]); a.v_cvt_pk_bf16_f32(E2[1], GV[2], GV[3])
        a.v_cvt_pk_bf16_f32(E2[2], SV[0], SV[1]); a.v_cvt_pk_bf16_f32(E2[3], SV[2], SV[3])
        a.v_mov_b32(E2[4], '0x3f803f80'); a.v_mov_b32(E2[5], '0x3f803f80'); a.v_mov_b32(E2[6], 0); a.v_mov_b32(E2[7], 0)
        ve = v(); t = L.shl(ve, lt, 3); L.add(ve, LDS_E, t)
        for r_ in range(4): a.ds_write_b64(ve, E2.sub(2 * r_, 2), mods=f'offset:{ERS * r_}')
        a('s_waitcnt lgkmcnt(0)')
        k.stamp(6)
    def mid():
        for i in range(8): a.buffer_load_dwordx4(P8.sub(4 * i, 4), vs, rS, sso, mods=f'offen offset:{16 * i}')
        a.buffer_load_dword(CPv[0], vz, rS, sc0, mods='offen')
        a.buffer_load_dwordx2(B1, vb, rB1, sco, mods='offen')
    G.nfirst = 2; G.pre0 = pre0; G.mid = mid
    def post():
        sv = s(2)
        bf = v(4, 4)
        unpack_bf16(a, bf[0], bf[1], B1[0]); unpack_bf16(a, bf[2], bf[3], B1[1])
        vw = v(); L.add(vw, LDS_CV + 3 * 896, L.shl(vw, lt, 4))
        a.v_cmp_gt_u32('vcc', 56, vlt); a.s_and_saveexec_b64(sv, 'vcc')
        labb = k.lbl('nob1'); a.s_cbranch_execz(labb)
        a.ds_write_b128(vw, bf)
        a.label(labb)
        a.s_mov_b64('exec', sv)
        inv = fhex(1 / 1024)
        a.v_add_f32_dpp(CPv[0], CPv[0], CPv[0], mods='row_ror:8 row_mask:0xf bank_mask:0xf')
        a.v_mov_b32(CPv[1], CPv[0]); a.v_permlane16_swap_b32(CPv[0], CPv[1]); a.v_add_f32(CPv[0], CPv[0], CPv[1])
        a.v_mov_b32(CPv[1], CPv[0]); a.v_permlane32_swap_b32(CPv[0], CPv[1]); a.v_add_f32(CPv[0], CPv[0], CPv[1])
        a.v_mul_f32(CPv[0], inv, CPv[0])
        CP = s(5)
        for j in range(5): a.v_readlane_b32(CP[j], CPv[0], j)
        mg, mg2, mgs, ms, ms2 = (CP[j] for j in range(5))
        for n in (2, 1):
            for i in range(n):
                for j in range(6): a.v_add_f32(P8[8 * i + j], P8[8 * i + j], P8[8 * (i + n) + j])
        for j in range(6): a.v_add_f32_dpp(P8[j], P8[j], P8[j], mods='quad_perm:[1,0,3,2] row_mask:0xf bank_mask:0xf')
        for j in range(6): a.v_mul_f32(P8[j], inv, P8[j])
        mz, mz2, mzg, mz2g2, mzg2, mzgs = (P8[j] for j in range(6))
        x0, x1, x2, x3, r1, r2, mu2 = (P8[8 + j] for j in range(7))
        eps = fhex(1e-5)
        a(f'v_fma_f32 {x0}, -{mz}, {mz}, {mz2}')
        a.v_max_f32(x0, 0, x0)
        a.v_add_f32(x0, eps, x0); a.v_rsq_f32(r1, x0)
        a(f'v_fma_f32 {x1}, -{mz}, {mg}, {mzg}'); a.v_fma_f32(mu2, r1, x1, ms)
        a.v_mul_f32(x1, mg2, mz); a(f'v_fma_f32 {x1}, -2.0, {mzg2}, {x1}'); a.v_fma_f32(x1, x1, mz, mz2g2)
        a.v_mul_f32(x1, x1, r1)
        a(f'v_fma_f32 {x2}, -{mz}, {mgs}, {mzgs}'); a(f'v_fma_f32 {x1}, 2.0, {x2}, {x1}')
        a.v_fma_f32(x1, x1, r1, ms2)
        a(f'v_fma_f32 {x1}, -{mu2}, {mu2}, {x1}'); a.v_max_f32(x1, 0, x1); a.v_add_f32(x1, eps, x1); a.v_rsq_f32(r2, x1)
        o = P8.sub(16, 4)
        a.v_mul_f32(o[0], r1, r2)
        a(f'v_mul_f32 {o[1]}, {mz}, {o[0]}'); a.v_sub_f32(o[1], 0, o[1])
        a.v_mov_b32(o[2], r2)
        a.v_mul_f32(o[3], mu2, r2); a.v_sub_f32(o[3], 0, o[3])
        vw2 = v(); t = L.shr(vw2, lt, 1); t = L.shl(vw2, t, 4); L.add(vw2, LDS_RS, t)
        L.and_(vt, lt, 1)
        a.v_cmp_eq_u32('vcc', 0, vt); a.s_and_saveexec_b64(sv, 'vcc')
        a.ds_write_b128(vw2, o)
        a.s_mov_b64('exec', sv)
    G.loader_run(sw4, pre_issue=pre, post=post)
    k.stamp(1)
    a('s_waitcnt lgkmcnt(0)\ns_barrier')
    a.label(labE)
    v.release(mk)
    a('s_barrier')
    k.stamp(2)
    sh = s(); a.s_mul_i32(sh, smt, 128 * 7168); a.s_add_u32(sh, sh, sco)
    rH = k.srd(pws, WS_HH, 128 * 7168, dyn_off=sh); a.s_sub_u32(rH[2], 128 * 7168, sco)
    RS = 464
    vi, vr_, vc_, vl, vg = v(), v(), v(), v(7), v(7)
    D = v(28, 4)
    for i in range(7):
        idx = L.add(vi, 512 * i, k.tid) if i else L.mov(vi, k.tid)
        r = L.mul(vr_, 9363, idx); r = L.shr(vr_, r, 18); assert (r.val == idx.val // 28).all()
        m28 = L.mul(vc_, 28, r); a.v_sub_u32(vc_, vi, vc_); c = L.mk(vc_, idx.val - m28.val)
        t = L.mul(vl[i], RS, r); L.lshl_add(vl[i], c, 4, t)
        t = L.mul(vg[i], 7168, r); L.lshl_add(vg[i], c, 4, t)
        a.ds_read_b128(D.sub(4 * i, 4), vl[i])
    for i in range(7):
        a(f's_waitcnt lgkmcnt({6 - i})')
        a.buffer_store_dwordx4(D.sub(4 * i, 4), vg[i], rH, 0, mods=f'offen {ST}')
    k.stamp(3)
    return k
```

```python
from asmgen import *
from lanes import *
import numpy as np

KA = dict(x=0, wq=8, wk=16, wv=24, wo=32, bx=40, w1=48, b1=56, w2=64, b2=72, c=80, wmod=88, out=96, dbg=104, ws=112)
WS_MOD  = 0x0
WS_MP1  = 0x100000
WS_MP2  = 0x110000
WS_KM   = 0x8000
WS_STAT = 0x10000
WS_RS   = 0x120000
WS_KF   = 0x200000
WS_VF   = 0x220000
WS_H1   = 0x400000
WS_QF   = 0x1400000
WS_O    = 0x800000
WS_X1   = 0xC00000
WS_XG   = 0x1000000
WS_HH   = 0x2000000
WS_DBG  = 0x8000000
WS_SIZE = 268435456

import os
DEBUG_STAMPS = os.environ.get('STAMPS', '0') == '1'

class Kern:
    def __init__(self, name, nthreads, lds, grid, nv=256):
        self.name, self.nthreads, self.lds, self.grid = name, nthreads, lds, grid
        self.a = Asm()
        self.v = Alloc('v', 1, nv)
        self.s = Alloc('s', 4, 100)
        self.L = LaneCtx(self.a, nthreads)
        self.tid = LV(Reg('v', 0), self.L.tid)
        self.uid = 0
    def stamp_init(self, kidx):
        self.dbg = DEBUG_STAMPS
        if not self.dbg: return
        a = self.a
        self.kidx = kidx
        self.st_t = self.s(4); self.st_v = self.v(4, 2)
        a.v_mov_b32(self.st_v[0], 0); a.v_mov_b32(self.st_v[1], 0)
        a.v_lshrrev_b32(self.st_v[2], 6, 'v0')
        self.stamp(0)
    def stamp(self, i):
        if not self.dbg: return
        a = self.a
        a.s_memrealtime(self.st_t.sub(0, 2))
        a.s_memtime(self.st_t.sub(2, 2))
        a('s_waitcnt lgkmcnt(0)')
        a.v_writelane_b32(self.st_v[0], self.st_t[0], i); a.v_writelane_b32(self.st_v[1], self.st_t[2], i)
    def stamp_dyn(self, sidx):
        if not self.dbg: return
        a = self.a
        a.s_memrealtime(self.st_t.sub(0, 2))
        a.s_memtime(self.st_t.sub(2, 2))
        a('s_waitcnt lgkmcnt(0)')
        a.s_mov_b32('m0', sidx)
        a.v_writelane_b32(self.st_v[0], self.st_t[0], 'm0'); a.v_writelane_b32(self.st_v[1], self.st_t[2], 'm0')
    def stamp_flush(self):
        a = self.a
        p = self.st_t
        a.s_mov_b64('exec', -1)
        a.s_load_dwordx2(p.sub(0, 2), 's[0:1]', KA['ws'])
        a('s_waitcnt lgkmcnt(0)')
        r = self.s(4)
        a.s_lshl_b32(r[2], 's2', 11); a.s_add_u32(r[2], r[2], hex(WS_DBG + self.kidx * 0x100000))
        a.s_add_u32(r[0], p[0], r[2]); a.s_addc_u32(r[1], p[1], 0); a.s_mov_b32(r[2], 2048); a.s_mov_b32(r[3], '0x20000')
        a.v_lshlrev_b32(self.st_v[2], 7, self.st_v[2]); a.v_and_b32(self.st_v[3], 63, 'v0'); a.v_lshl_add_u32(self.st_v[2], self.st_v[3], 3, self.st_v[2])
        a.v_cmp_gt_u32('vcc', 16, self.st_v[3]); a.s_and_saveexec_b64(p.sub(2, 2), 'vcc')
        a.buffer_store_dwordx2(self.st_v.sub(0, 2), self.st_v[2], r, 0, mods='offen')
    def lbl(self, base):
        self.uid += 1
        return f"L_{self.name}_{base}_{self.uid}"
    def ptr(self, key):
        r = self.s(2)
        self.a.s_load_dwordx2(r, 's[0:1]', KA[key])
        return r
    def srd(self, ptr, off, nbytes, dyn_off=None, dst=None):
        a = self.a
        r = dst if dst is not None else self.s(4)
        if off == 0 and dyn_off is None:
            a.s_mov_b32(r[0], ptr[0]); a.s_mov_b32(r[1], ptr[1])
        else:
            if off != 0:
                a.s_add_u32(r[0], ptr[0], hex(off)); a.s_addc_u32(r[1], ptr[1], 0)
                if dyn_off is not None:
                    a.s_add_u32(r[0], r[0], dyn_off); a.s_addc_u32(r[1], r[1], 0)
            else:
                a.s_add_u32(r[0], ptr[0], dyn_off); a.s_addc_u32(r[1], ptr[1], 0)
        if isinstance(nbytes, int): a.s_mov_b32(r[2], hex(nbytes))
        else: a.s_mov_b32(r[2], nbytes)
        a.s_mov_b32(r[3], '0x20000')
        return r
    def exit_if_wg_ge(self, n):
        self.a.s_cmp_ge_u32('s2', n)
        self.a.s_cbranch_scc1(f'L_{self.name}_exit')
    def finish(self):
        a = self.a
        a.label(f'L_{self.name}_end')
        if getattr(self, 'dbg', False): self.stamp_flush()
        a.label(f'L_{self.name}_exit')
        a('s_endpgm')
        lines, npad = pad_hazards_fast(a.lines)
        probs = lint_waits(lines, self.name)
        probs += lint_waits(lines, self.name + '(fwd)', take_fwd=lambda t: not (t.endswith('_end') or t.endswith('_exit')))
        for p in probs[:20]: print('LINT', p)
        nv = max(8, (self.v.hi + 7) // 8 * 8)
        ns = self.s.hi
        body = '\n'.join(('  ' + l if not l.endswith(':') else l) for l in lines)
        txt = f'''.globl {self.name}
.p2align 8
.type {self.name},@function
{self.name}:
{body}
'''
        desc = f'''.amdhsa_kernel {self.name}
  .amdhsa_next_free_vgpr {nv}
  .amdhsa_next_free_sgpr {max(ns, 16)}
  .amdhsa_accum_offset {nv}
  .amdhsa_group_segment_fixed_size 0
  .amdhsa_kernarg_size 120
  .amdhsa_user_sgpr_count 2
  .amdhsa_user_sgpr_kernarg_segment_ptr 1
  .amdhsa_system_sgpr_workgroup_id_x 1
  .amdhsa_float_denorm_mode_32 3
  .amdhsa_float_denorm_mode_16_64 3
.end_amdhsa_kernel
'''
        print(f'{self.name}: {len(lines)} lines, vgpr {nv}, sgpr {ns}, pads {npad}, lds {self.lds}')
        return txt, desc

def assemble_file(kerns, header_path, out_path):
    hdr = []
    for ln in open(header_path).read().split('\n'):
        if ln.startswith(';') and '@launch' not in ln and 'Override launch' not in ln and 'grid=ceil' not in ln: hdr.append(ln)
        elif not ln.startswith(';'): break
    s = '\n'.join(hdr) + '\n'
    for k, _, _ in kerns:
        s += f'; @launch kernel={k.name} grid=({k.grid},1,1) block=({k.nthreads},1,1) lds={k.lds}\n'
    s += '.amdgcn_target "amdgcn-amd-amdhsa--gfx950"\n.text\n'
    seen = set()
    for i, (k, txt, _) in enumerate(kerns):
        if k.name in seen: continue
        if i == 1: s += '.p2align 8\nCODE_BEGIN:\n'
        seen.add(k.name); s += txt
    s += 'CODE_END:\n  s_endpgm\n'
    s += '.section .rodata,"a"\n'
    seen = set()
    for k, _, desc in kerns:
        if k.name in seen: continue
        seen.add(k.name); s += '.p2align 6\n' + desc
    open(out_path, 'w').write(s)

def wave_sum_dpp(a, regs):
    for mod in ('row_shr:1', 'row_shr:2', 'row_shr:4', 'row_shr:8'):
        for r in regs: a.v_add_f32_dpp(r, r, r, mods=f'{mod} row_mask:0xf bank_mask:0xf bound_ctrl:0')
    for r in regs: a.v_add_f32_dpp(r, r, r, mods='row_bcast:15 row_mask:0xa bank_mask:0xf')
    for r in regs: a.v_add_f32_dpp(r, r, r, mods='row_bcast:31 row_mask:0xc bank_mask:0xf')

def unpack_bf16(a, dst_lo, dst_hi, src):
    a.v_lshlrev_b32(dst_lo, 16, src)
    a.v_and_b32(dst_hi, '0xffff0000', src)
```

```python
from common import *
from k12 import fhex, round_bf16
import os

def w_swz_fn(CH):
    if CH == 28: return lambda k: 2 * ((k >> 3) & 1)
    if CH == 8:  return lambda k: 2 * (((k >> 1) & 1) | (((k >> 3) & 1) << 1))
    if CH == 16: return lambda k: 2 * ((k & 3) + 4 * ((k >> 3) & 1))
    raise ValueError

def emit_w_swz(L, dst, tmp, kv, CH):
    if CH == 28:
        t = L.bfe(dst, kv, 3, 1); return L.shl(dst, t, 1)
    if CH == 8:
        t = L.and_(dst, kv, 2); u = L.bfe(tmp, kv, 3, 1); return L.lshl_or(dst, u, 2, t)
    if CH == 16:
        t = L.and_(dst, kv, 3); u = L.bfe(tmp, kv, 3, 1); t = L.lshl_or(dst, u, 2, t); return L.shl(dst, t, 1)

ABL = os.environ.get('ABL', '')

class Gemm:
    def __init__(self, k, BM, BN, WM, WN, nstage, NS, ldx, ldw, lds0=0):
        self.k = k; self.BM, self.BN, self.WM, self.WN = BM, BN, WM, WN
        self.nstage, self.NS, self.ldx, self.ldw, self.lds0 = nstage, NS, ldx, ldw, lds0
        self.CH = BN // 8
        self.front = 0.8
        self.XB = BM * 128; self.WB = 64 * BN * 2
        self.SLOT = self.XB + self.WB
        self.NX = BM // 8 // 4; self.NW = self.CH // 4; self.NI = self.NX + self.NW
        self.TM, self.TN = BM // WM, BN // WN
        self.mt, self.nt = self.TM // 16, self.TN // 16
        assert WM * WN == 4 and (BM // 8) % 4 == 0 and self.CH % 4 == 0

    def loader_setup(self, lane_, w_, rX, rW):
        k, L, v, s = self.k, self.k.L, self.k.v, self.k.s
        self.rX, self.rW = rX, rW
        t1, t2, t3 = v(), v(), v()
        self.vX = v(self.NX); self.vW = v(self.NW)
        r0 = L.shr(t1, lane_, 3); r0 = L.lshl_add(t1, w_, 3, r0)
        z = L.bfe(t2, r0, 1, 3); c = L.and_(t3, lane_, 7); c = L.xor(t2, c, z)
        b = L.mul(t1, self.ldx, r0); b = L.lshl_add(self.vX[0], c, 4, b)
        for j in range(1, self.NX): L.add(self.vX[j], 32 * j * self.ldx, b)
        l = L.tid & 63; w = w_.val
        for j in range(self.NX):
            row = 8 * (4 * j + w) + (l >> 3)
            ref = row * self.ldx + (((l & 7) ^ ((row >> 1) & 7)) * 16)
            got = b.val + 32 * j * self.ldx
            assert (ref == got).all()
        g = w_swz_fn(self.CH)
        for j in range(self.NW):
            idxr = 64 * (4 * j + w_.val) + l; kr = idxr // self.CH; pr = idxr % self.CH
            ref = kr * self.ldw + ((pr ^ np.array([g(int(x)) for x in kr])) * 16)
            if self.CH != 28 and j > 0:
                d = ref - self.vW0.val
                assert (d == d[0]).all()
                L.add(self.vW[j], int(d[0]), self.vW0)
                continue
            idx = L.lshl_add(t1, w_, 6, lane_)
            if j: idx = L.add(t1, 256 * j, idx)
            if self.CH == 28:
                kk = L.mul(t2, 2341, idx); kk = L.shr(t2, kk, 16)
                assert (kk.val == idx.val // 28).all()
                m = L.mul(t3, 28, kk)
                k.a.v_sub_u32(t3, t1, t3); pos = L.mk(t3, idx.val - m.val)
            else:
                sh = {8: 3, 16: 4}[self.CH]
                kk = L.shr(t2, idx, sh); pos = L.and_(t3, idx, self.CH - 1)
            sw = emit_w_swz(L, t1, self.vW[j], kk, self.CH)
            ch = L.xor(t3, pos, sw)
            b = L.mul(t2, self.ldw, kk); r = L.lshl_add(self.vW[j], ch, 4, b)
            assert (ref == r.val).all()
            if j == 0: self.vW0 = r
        self.sKX, self.sKW, self.sM = s(), s(), s()
        self.sW1k = s()

    def loader_issue(self, slot_imm=None):
        a = self.k.a
        for j in range(self.NX if 'nodma' not in ABL else 0):
            a.s_add_u32('m0', self.sM, 4096 * j)
            a.buffer_load_dwordx4(self.vX[j], self.rX, self.sKX, mods='offen lds')
        for j in range(self.NW if 'nodma' not in ABL else 0):
            a.s_add_u32('m0', self.sM, self.XB + 4096 * j)
            a.buffer_load_dwordx4(self.vW[j], self.rW, self.sKW, mods='offen lds')
        a.s_add_u32(self.sKX, self.sKX, 128)
        a.s_add_u32(self.sKW, self.sKW, 64 * self.ldw)
        a.s_add_u32(self.sM, self.sM, self.SLOT)
        a.s_cmp_ge_u32(self.sM, self.sEnd)
        a.s_cselect_b32('s3', self.NS * self.SLOT, 0)
        a.s_sub_u32(self.sM, self.sM, 's3')

    def loader_run(self, sw, kx0=0, kw0=0, pre_issue=None, post=None):
        k, a, s = self.k, self.k.a, self.k.s
        NS, n, NI = self.NS, self.nstage, self.NI
        self.sEnd = s()
        a.s_lshl_b32(self.sM, sw, 10); a.s_add_u32(self.sM, self.sM, self.lds0)
        a.s_add_u32(self.sEnd, self.sM, NS * self.SLOT)
        if isinstance(kx0, int): a.s_mov_b32(self.sKX, kx0)
        else: a.s_mov_b32(self.sKX, kx0)
        if isinstance(kw0, int): a.s_mov_b32(self.sKW, kw0)
        else: a.s_mov_b32(self.sKW, kw0)
        npro = min(NS, n)
        nfirst = getattr(self, 'nfirst', npro)
        if getattr(self, 'pre0', None): self.pre0()
        for i in range(nfirst): self.loader_issue()
        if pre_issue: pre_issue()
        a(f's_waitcnt vmcnt({(nfirst - 1) * NI})')
        a('s_barrier')
        for i in range(nfirst, npro): self.loader_issue()
        if getattr(self, 'mid', None): self.mid()
        nsteady = n - NS
        first = True
        if nsteady > 0:
            sc = s()
            a.s_mov_b32(sc, nsteady)
            lab = k.lbl('ldloop')
            a.label(lab)
            a(f's_waitcnt vmcnt({(NS - 2) * NI})')
            a('s_barrier')
            self.loader_issue()
            a.s_sub_u32(sc, sc, 1)
            a.s_cmp_lg_u32(sc, 0)
            a.s_cbranch_scc1(lab)
        for st in range(max(0, n - NS), n):
            issued_last = n - 1
            rem = max(0, issued_last - (st + 1))
            a(f's_waitcnt vmcnt({rem * NI})')
            a('s_barrier')
        if post: post()

    def consumer_setup(self, lane_, w_):
        k, L, v, s = self.k, self.k.L, self.k.v, self.k.s
        t1, t2, t3 = v(), v(), v()
        WN = self.WN
        l = L.tid & 63
        wv = w_.val
        wm_v, wn_v = wv // WN, wv % WN
        self.bX = v(2)
        m = L.and_(t1, lane_, 15); z = L.bfe(t2, lane_, 1, 3); g16 = L.shr(t3, lane_, 4); c = L.xor(t2, z, g16)
        b = L.shl(self.bX[0], m, 7); b = L.lshl_add(self.bX[0], c, 4, b)
        wm = L.shr(t1, w_, {1: 0, 2: 1, 4: 2}[WN])
        b = L.lshl_add(self.bX[0], wm, int(np.log2(self.TM * 128)), b)
        b1 = L.xor(self.bX[1], b, 64)
        for st, reg in ((0, b), (1, b1)):
            row = wm_v * self.TM + (l & 15)
            ref = row * 128 + (((4 * st + (l >> 4)) ^ ((row >> 1) & 7)) << 4)
            assert (reg.val == ref).all()
        g = w_swz_fn(self.CH); CH = self.CH
        def waddr(st, half, t):
            kk = 32 * st + 8 * (l >> 4) + 4 * half + ((l & 15) >> 2)
            ch = wn_v * (self.TN // 8) + 2 * t + ((l & 3) >> 1)
            gk = np.array([g(int(x)) for x in kk])
            return kk * CH * 16 + ((ch ^ gk) << 4) + (l & 1) * 8
        pats = []
        self.wref = {}
        for st in range(2):
            for half in range(2):
                for t in range(self.nt):
                    ad = waddr(st, half, t)
                    for pi, (rep, arr) in enumerate(pats):
                        dlt = ad - arr
                        if (dlt == dlt[0]).all() and 0 <= dlt[0] < 32768:
                            self.wref[(st, half, t)] = (pi, int(dlt[0])); break
                    else:
                        pats.append(((st, half, t), ad)); self.wref[(st, half, t)] = (len(pats) - 1, 0)
        self.bW = v(len(pats))
        wn = L.and_(t1, w_, WN - 1)
        for pi, ((st, half, t), arr) in enumerate(pats):
            kk = L.shr(t2, lane_, 4); kk = L.shl(t2, kk, 3); r = L.bfe(t3, lane_, 2, 2); kk = L.add(t2, kk, r)
            if 32 * st + 4 * half: kk = L.add(t2, 32 * st + 4 * half, kk)
            sw = emit_w_swz(L, t3, self.bW[pi], kk, CH)
            c1 = L.bfe(self.bW[pi], lane_, 1, 1)
            tw = v()
            ch = L.mul(tw, self.TN // 8, wn); ch = L.add(tw, ch, c1)
            if t: ch = L.add(tw, 2 * t, ch)
            ch = L.xor(t3, ch, sw)
            b = L.mul(t2, CH * 16, kk); b = L.lshl_add(t2, ch, 4, b)
            c0 = L.and_(t3, lane_, 1); r = L.lshl_add(self.bW[pi], c0, 3, b)
            r = L.add(self.bW[pi], self.XB, r)
            assert (r.val - self.XB == arr).all()
        self.npat = len(pats)
        self.aX = v(2); self.aW = v(self.npat)
        self.acc = v(4 * self.mt * self.nt, 4)
        self.full = getattr(self, 'full', False)
        nset = 4 if self.full else 2
        self.fX = [v(4 * self.mt, 4) for _ in range(nset)]
        self.fW = [v(4 * self.nt, 4) for _ in range(nset)]
        self.sSlot, self.sSlotEnd = s(), s()
        self.ext = None

    def enable_extra(self, vaddr):
        v = self.k.v
        self.vE = vaddr; self.fE = [v(4, 4), v(4, 4)]; self.accE = v(16, 4); self.ext = []

    def _set_addr(self):
        a = self.k.a
        out = []
        for i in range(2): out.append(('v_add_u32', self.aX[i], self.sSlot, self.bX[i]))
        for i in range(self.npat): out.append(('v_add_u32', self.aW[i], self.sSlot, self.bW[i]))
        return out

    def _reads(self, st, setidx):
        out = []
        if 'noread' in ABL: return out
        for m in range(self.mt):
            out.append(f'ds_read_b128 {self.fX[setidx].sub(4 * m, 4)}, {self.aX[st]} offset:{2048 * m}')
        for t in range(self.nt):
            for half in range(2):
                pi, off = self.wref[(st, half, t)]
                out.append(f'ds_read_b64_tr_b16 {self.fW[setidx].sub(4 * t + 2 * half, 2)}, {self.aW[pi]} offset:{off}')
        if self.ext is not None:
            out.append(f'ds_read_b128 {self.fE[setidx]}, {self.vE} offset:{64 * st}')
        return out

    def _mfmas(self, setidx, first=False):
        out = []
        if 'nomfma' in ABL: return ['s_nop 0']
        for t in range(self.nt):
            for m in range(self.mt):
                acc = self.acc.sub(4 * (m * self.nt + t), 4)
                out.append(f'v_mfma_f32_16x16x32_bf16 {acc}, {self.fW[setidx].sub(4 * t, 4)}, {self.fX[setidx].sub(4 * m, 4)}, {0 if first else acc}')
            if self.ext is not None and t in self.ext:
                acc = self.accE.sub(4 * self.ext.index(t), 4)
                out.append(f'v_mfma_f32_16x16x32_bf16 {acc}, {self.fW[setidx].sub(4 * t, 4)}, {self.fE[setidx]}, {acc}')
        return out

    def _interleave(self, mf, others):
        a = self.k.a
        n, m = len(mf), len(others)
        j = 0
        for i, x in enumerate(mf):
            a(x)
            tgt = (i + 1) * m // n if n else m
            tgt = min(m, int(np.ceil((i + 1) * m / (self.front * n))))
            while j < tgt:
                a(others[j]); j += 1
        while j < m:
            a(others[j]); j += 1

    def _adv_slot(self):
        return [f's_add_u32 {self.sSlot}, {self.sSlot}, {self.SLOT}', f's_cmp_ge_u32 {self.sSlot}, {self.sSlotEnd}',
                f's_cselect_b32 s3, {self.NS * self.SLOT}, 0', f's_sub_u32 {self.sSlot}, {self.sSlot}, s3']

    def consumer_run(self):
        k, a, s = self.k, self.k.a, self.k.s
        n = self.nstage
        a.s_mov_b32(self.sSlot, self.lds0); a.s_mov_b32(self.sSlotEnd, self.lds0 + self.NS * self.SLOT)
        for x in self._set_addr(): a.emit(*x)
        for i in range(len(self.acc)): a.v_mov_b32(self.acc[i], 0)
        if self.ext is not None:
            for i in range(16): a.v_mov_b32(self.accE[i], 0)
        k.stamp(7)
        a('s_barrier')
        k.stamp(8)
        if self.full:
            return self._run_full()
        for x in self._reads(0, 0): a(x)
        if not hasattr(self, 'sc'): self.sc = s()
        sc = self.sc
        a.s_mov_b32(sc, n)
        lab = k.lbl('cloop')
        a.label(lab)
        a('s_waitcnt lgkmcnt(0)')
        self._interleave(self._mfmas(0), self._reads(1, 1))
        a('s_waitcnt lgkmcnt(0)')
        a('s_barrier')
        adv = self._adv_slot() + [' '.join([x[0], ', '.join(str(y) for y in x[1:])]) for x in self._set_addr()]
        if self.ext is not None: adv.append(f'v_add_u32 {self.vE}, 128, {self.vE}')
        self._interleave(self._mfmas(1), adv + self._reads(0, 0))
        a.s_sub_u32(sc, sc, 1)
        a.s_cmp_lg_u32(sc, 0)
        a.s_cbranch_scc1(lab)
        a('s_waitcnt lgkmcnt(0)')

    def _run_full(self):
        k, a, s = self.k, self.k.a, self.k.s
        n = self.nstage
        assert n % 2 == 0
        for x in self._reads(0, 0) + self._reads(1, 1): a(x)
        sc = s(); a.s_mov_b32(sc, n // 2)
        lab = k.lbl('cloop')
        a.label(lab)
        for p in (0, 1):
            a('s_waitcnt lgkmcnt(0)')
            a('s_barrier')
            adv = self._adv_slot() + [' '.join([x[0], ', '.join(str(y) for y in x[1:])]) for x in self._set_addr()]
            q = 1 - p
            self.front = 0.55
            self._interleave(self._mfmas(2 * p) + self._mfmas(2 * p + 1), adv + self._reads(0, 2 * q) + self._reads(1, 2 * q + 1))
        a.s_sub_u32(sc, sc, 1)
        a.s_cmp_lg_u32(sc, 0)
        a.s_cbranch_scc1(lab)
        a('s_waitcnt lgkmcnt(0)')
```

```python
from common import *
import os

LOG2E = 1.4426950408889634
def fhex(x):
    return hex(int(np.float32(x).view(np.uint32)))

def round_bf16(a, r, tmp=None):
    a.v_cvt_pk_bf16_f32(r, r, r)
    a.v_and_b32(r, '0xffff0000', r)

STH = os.environ.get('STH', '')
ST = os.environ.get('ST', 'sc1')

def silu_bf16(a, c, e):
    n = len(c)
    for i in range(n): a.v_lshlrev_b32(c[i], 16, c[i])
    for i in range(n): a.v_mul_f32(e[i], fhex(-LOG2E), c[i])
    for i in range(n): a.v_exp_f32(e[i], e[i])
    for i in range(n): a.v_add_f32(e[i], 1.0, e[i])
    for i in range(n): a.v_rcp_f32(e[i], e[i])
    for i in range(n): a.v_mul_f32(c[i], c[i], e[i])
    for i in range(n): round_bf16(a, c[i])

def gen_k1():
    k = Kern('k1_mod_kernel', 1024, 8192, 256)
    a, L, v, s = k.a, k.L, k.v, k.s
    k.exit_if_wg_ge(256)
    k.stamp_init(0)
    pc = k.ptr('c'); pw = k.ptr('wmod'); pws = k.ptr('ws')
    px = k.ptr('x'); pq = k.ptr('wq'); pk = k.ptr('wk'); pv = k.ptr('wv')
    sx, si, sch, skq = s(), s(), s(), s()
    a.s_lshr_b32(skq, 's2', 6)
    a.s_and_b32(sx, 's2', 7); a.s_lshr_b32(si, 's2', 3); a.s_and_b32(si, si, 7)
    a.s_lshr_b32(sch, si, 1); a.s_lshl_b32(sch, sch, 4); a.s_lshl_b32(sx, sx, 1); a.s_add_u32(sch, sch, sx)
    a.s_and_b32(si, si, 1); a.s_add_u32(sch, sch, si)
    voff, vc, vt = v(), v(), v()
    rg = L.shr(vt, k.tid, 2)
    t1 = L.mul(voff, 12288, rg)
    t2 = L.and_(vc, k.tid, 3)
    L.lshl_add(voff, t2, 4, t1)
    L.shl(vc, rg, 1)
    so, sco = s(), s()
    a.s_mul_i32(so, skq, 256 * 12288); a.s_lshl_b32('s3', sch, 6); a.s_add_u32(so, so, 's3')
    a.s_lshl_b32(sco, skq, 9)
    a('s_waitcnt lgkmcnt(0)')
    rW = k.srd(pw, 0, 1024 * 6144 * 2); rC = k.srd(pc, 0, 2048)
    w = v(4, 4); c = v(1)
    a.buffer_load_dwordx4(w, voff, rW, so, mods='offen')
    a.buffer_load_ushort(c[0], vc, rC, sco, mods='offen')
    vg, vd = v(), v(); A = v(2, 2); B = v(2, 2)
    a.s_mul_i32('s3', 's2', 196); a.v_add_u32(vg, 's3', 'v0')
    sv = s(2)
    a.v_cmp_gt_u32('vcc', 196, 'v0'); a.s_and_saveexec_b64(sv, 'vcc')
    labp = k.lbl('nopf'); a.s_cbranch_execz(labp)
    a.v_mov_b32(A[0], px[0]); a.v_mov_b32(A[1], px[1]); a.v_mov_b32(vd, 0)
    for (pp, start) in ((pq, 32768), (pk, 49152), (pv, 49664)):
        a.v_cmp_le_u32('vcc', start, vg)
        a.v_mov_b32(B[0], pp[0]); a.v_mov_b32(B[1], pp[1])
        a.v_cndmask_b32(A[0], A[0], B[0], 'vcc'); a.v_cndmask_b32(A[1], A[1], B[1], 'vcc')
        a.v_mov_b32(B[0], start); a.v_cndmask_b32(vd, vd, B[0], 'vcc')
    a.v_sub_u32(vg, vg, vd); a.v_lshlrev_b32(vg, 7, vg)
    a.v_add_co_u32(A[0], 'vcc', A[0], vg); a.v_addc_co_u32(A[1], 'vcc', 0, A[1], 'vcc')
    a.global_load_dword(vd, A, 'off')
    a.label(labp)
    a.s_mov_b64('exec', sv)
    labc = k.lbl('nocode')
    a.s_cmp_lt_u32('s2', 8); a.s_cbranch_scc0(labc)
    spc = s(2); vcd, vco = v(), v(); CA = v(2, 2)
    a.s_getpc_b64(spc)
    a.label('L_k1_pc')
    a.s_add_u32(spc[0], spc[0], '(CODE_BEGIN-L_k1_pc)'); a.s_addc_u32(spc[1], spc[1], 0)
    a.v_subrev_u32(vco, 256, 'v0'); a.v_lshlrev_b32(vco, 7, vco)
    a.v_cmp_gt_u32('vcc', '(CODE_END-CODE_BEGIN)', vco)
    a.s_and_saveexec_b64(sv, 'vcc')
    a.s_cbranch_execz(labc + '_r')
    a.v_mov_b32(CA[1], spc[1]); a.v_add_co_u32(CA[0], 'vcc', spc[0], vco); a.v_addc_co_u32(CA[1], 'vcc', 0, CA[1], 'vcc')
    a.global_load_dword(vcd, CA, 'off')
    a.label(labc + '_r')
    a.s_mov_b64('exec', sv)
    a.label(labc)
    acc = v(8, 4); e = v(1); lo, hi = v(), v()
    a('s_waitcnt vmcnt(1)')
    a('s_waitcnt vmcnt(0)') if False else None
    return k, locals()

def gen_k1_full():
    k, d = gen_k1()
    a, L, v, s = k.a, k.L, k.v, k.s
    w, c, acc, e, lo, hi, vt, sch, skq, pws, sv = (d[n] for n in ('w', 'c', 'acc', 'e', 'lo', 'hi', 'vt', 'sch', 'skq', 'pws', 'sv'))
    a.lines.pop()
    sw = s(); a.v_readfirstlane_b32(sw, 'v0')
    labA, labB = k.lbl('wa'), k.lbl('wb')
    a.s_cmp_lt_u32(sw, 196); a.s_cbranch_scc1(labA)
    a('s_waitcnt vmcnt(0)'); a.s_branch(labB)
    a.label(labA); a('s_waitcnt vmcnt(1)')
    a.label(labB)
    silu_bf16(a, [c[0]], e)
    for j in range(4):
        unpack_bf16(a, lo, hi, w[j])
        a.v_mul_f32(acc[2 * j], c[0], lo); a.v_mul_f32(acc[2 * j + 1], c[0], hi)
    for m in ('row_ror:4', 'row_ror:8'):
        for j in range(8): a.v_add_f32_dpp(acc[j], acc[j], acc[j], mods=f'{m} row_mask:0xf bank_mask:0xf')
    va = v()
    t = L.shr(va, k.tid, 4); t = L.shl(va, t, 7)
    t3 = L.and_(vt, k.tid, 3); L.lshl_add(va, t3, 5, t)
    L.and_(vt, k.tid, 15)
    a.v_cmp_gt_u32('vcc', 4, vt)
    a.s_and_saveexec_b64(sv, 'vcc')
    a.ds_write_b128(va, acc.sub(0, 4)); a.ds_write_b128(va, acc.sub(4, 4), mods='offset:16')
    a.s_mov_b64('exec', sv)
    k.stamp(1)
    a('s_waitcnt lgkmcnt(0)\ns_barrier')
    a.s_cmp_ge_u32(sw, 64)
    a.s_cbranch_scc1(f'L_{k.name}_end')
    t = L.and_(va, k.tid, 31); t = L.shl(va, t, 2)
    th = L.bfe(vt, k.tid, 5, 1); L.lshl_add(va, th, 12, t)
    p = v(32)
    for i in range(32): a.ds_read_b32(p[i], va, mods=f'offset:{128 * i}')
    a('s_waitcnt lgkmcnt(0)')
    n = 32
    while n > 1:
        for i in range(n // 2): a.v_add_f32(p[i], p[i], p[i + n // 2])
        n //= 2
    a.v_mov_b32(p[1], p[0])
    a.v_permlane32_swap_b32(p[0], p[1])
    a.v_add_f32(p[0], p[0], p[1])
    rM = k.srd(pws, WS_MP1, 4 * 2048 * 4)
    sb = s(); a.s_lshl_b32(sb, skq, 13); a.s_lshl_b32('s3', sch, 7); a.s_add_u32(sb, sb, 's3')
    t = L.and_(va, k.tid, 31); L.shl(va, t, 2)
    a.v_cmp_gt_u32('vcc', 32, 'v0')
    a.s_and_saveexec_b64(sv, 'vcc')
    a.buffer_store_dword(p[0], va, rM, sb, mods='offen')
    a.s_mov_b64('exec', sv)
    k.stamp(3)
    return k

def gen_k2():
    LDS_R, LDS_S, LDS_H, LDS_W = 0, 16384, 20480, 53248
    LDS_M = 0
    k = Kern("k2_ln_kv_kernel", 512, LDS_W + 65536, 256)
    a, L, v, s = k.a, k.L, k.v, k.s
    k.exit_if_wg_ge(256)
    k.stamp_init(1)
    px = k.ptr('x'); pk = k.ptr('wk'); pv = k.ptr('wv'); pws = k.ptr('ws')
    sR, ssel, st = s(), s(), s()
    a.s_and_b32(sR, 's2', 3); a.s_lshl_b32(sR, sR, 5); a.s_lshr_b32('s3', 's2', 3); a.s_add_u32(sR, sR, 's3')
    a.s_bfe_u32(ssel, 's2', (1 << 16) | 2)
    pq = k.ptr('wq')
    lane, wv, vt, vt2 = v(), v(), v(), v()
    lane_ = L.and_(lane, k.tid, 63); wave_ = L.shr(wv, k.tid, 6)
    swv = s(); swave = L.rfl(swv, wave_)
    vw = v()
    t = L.shr(vt, lane_, 2); t = L.shl(vw, t, 6)
    u = L.shr(vt, lane_, 5); u = L.shl(vt, u, 1); p_ = L.and_(vt2, lane_, 3); u = L.xor(vt, u, p_)
    L.lshl_add(vw, u, 4, t)
    vx = v()
    t = L.shl(vt, wave_, 12); L.lshl_add(vx, lane_, 4, t)
    vm = v(); L.shl(vm, lane_, 5)
    a('s_waitcnt lgkmcnt(0)')
    a.s_cmp_eq_u32(ssel, 0)
    pw = s(2); a.s_cselect_b32(pw[0], pk[0], pv[0]); a.s_cselect_b32(pw[1], pk[1], pv[1])
    rW = k.srd(pw, 0, 65536)
    a.s_lshl_b32(st, sR, 15)
    rX = k.srd(px, 0, 32768, dyn_off=st)
    rH = k.srd(pws, WS_H1, 32768, dyn_off=st)
    rM = k.srd(pws, WS_MP1, 4 * 2048 * 4)
    x = v(16, 4)
    for i in range(2):
        for h in range(2):
            a.buffer_load_dwordx4(x.sub(8 * i + 4 * h, 4), vx, rX, 0, mods=f'offen offset:{2048 * i + 1024 * h}')
    sa = v(16, 4); g = v(16, 4)
    MP = v(16, 4); vmp = v(); L.shl(vmp, k.tid, 4)
    smp = s(4)
    for q in range(4):
        a.s_mov_b32(smp[q], 8192 * q)
        a.buffer_load_dwordx4(MP.sub(4 * q, 4), vmp, rM, smp[q], mods='offen')
    f = v(32, 2)
    k.stamp(4)
    a('s_waitcnt vmcnt(4)')
    k.stamp(5)
    for i in range(2):
        for j in range(8): unpack_bf16(a, f[16 * i + 2 * j], f[16 * i + 2 * j + 1], x[8 * i + j])
    sm_ = v(2); smu = s(2); srs = s(2)
    for i in range(2):
        a.v_add_f32(sm_[i], f[16 * i], f[16 * i + 1])
        for j in range(2, 16): a.v_add_f32(sm_[i], sm_[i], f[16 * i + j])
        a.v_mul_f32(sm_[i], fhex(1 / 1024), sm_[i])
    wave_sum_dpp(a, [sm_[0], sm_[1]])
    for i in range(2): a.v_readlane_b32(smu[i], sm_[i], 63)
    for i in range(2):
        for j in range(16): a.v_subrev_f32(f[16 * i + j], smu[i], f[16 * i + j])
    for i in range(2):
        a.v_mul_f32(sm_[i], f[16 * i], f[16 * i])
        for j in range(1, 16): a.v_fmac_f32(sm_[i], f[16 * i + j], f[16 * i + j])
        a.v_mul_f32(sm_[i], fhex(1 / 1024), sm_[i])
    wave_sum_dpp(a, [sm_[0], sm_[1]])
    for i in range(2): a.v_add_f32(sm_[i], fhex(1e-5), sm_[i])
    for i in range(2): a.v_rsq_f32(sm_[i], sm_[i])
    for i in range(2): a.v_readlane_b32(srs[i], sm_[i], 63)
    sm, so = s(), s()
    a.s_lshl_b32(so, swv, 13)
    for j in range(8):
        a.s_add_u32('m0', so, LDS_W + 1024 * j)
        if j: a.s_add_u32(sm, so, 1024 * j)
        a.buffer_load_dwordx4(vw, rW, sm if j else so, mods='offen lds')
    vq, vqd = v(), v()
    t = L.shr(vq, k.tid, 3); t = L.shl(vq, t, 11); u = L.and_(vqd, k.tid, 7); L.lshl_add(vq, u, 7, t)
    sq = s(); a.s_lshr_b32(sq, 's2', 3); a.s_lshl_b32(sq, sq, 16); a.s_lshl_b32('s3', ssel, 10); a.s_add_u32(sq, sq, 's3')
    rQ = k.srd(pq, 0, 1024 * 2048)
    labq = k.lbl('noq')
    a.s_cmp_ge_u32(swv, 4); a.s_cbranch_scc1(labq)
    a.buffer_load_dword(vqd, vq, rQ, sq, mods='offen')
    a.label(labq)
    NQ = 1
    k.stamp(6)
    a('s_waitcnt vmcnt(8)')
    k.stamp(7)
    for j in range(4):
        a.v_add_f32(MP[j], MP[j], MP[4 + j]); a.v_add_f32(MP[8 + j], MP[8 + j], MP[12 + j]); a.v_add_f32(MP[j], MP[j], MP[8 + j])
        round_bf16(a, MP[j])
    labg = k.lbl('noadd')
    a.s_cmp_ge_u32(swv, 4); a.s_cbranch_scc0(labg)
    for j in range(4):
        a.v_add_f32(MP[j], 1.0, MP[j]); round_bf16(a, MP[j])
    a.label(labg)
    a.ds_write_b128(vmp, MP.sub(0, 4), mods=f'offset:{LDS_M}')
    a('s_waitcnt lgkmcnt(0)\ns_barrier')
    for q, (dst, off) in enumerate(((sa.sub(0, 8), 0), (sa.sub(8, 8), 2048), (g.sub(0, 8), 4096), (g.sub(8, 8), 6144))):
        a.ds_read_b128(dst.sub(0, 4), vm, mods=f'offset:{LDS_M + off}'); a.ds_read_b128(dst.sub(4, 4), vm, mods=f'offset:{LDS_M + off + 16}')
    a('s_waitcnt lgkmcnt(0)')
    for i in range(2):
        for j in range(16):
            a.v_mul_f32(f[16 * i + j], srs[i], f[16 * i + j])
            a.v_fma_f32(f[16 * i + j], f[16 * i + j], g[j], sa[j])
        for j in range(8): a.v_cvt_pk_bf16_f32(x[8 * i + j], f[16 * i + 2 * j], f[16 * i + 2 * j + 1])
    vh = v(2)
    for i in range(2):
        r = L.lshl_add(vt, wave_, 1, i)
        c = L.xor(vt2, lane_, r)
        t = L.shl(vh[i], r, 11); t = L.lshl_add(vh[i], c, 4, t)
        L.add(vh[i], LDS_H, t)
    for i in range(2):
        a.ds_write_b128(vh[i], x.sub(8 * i, 4)); a.ds_write_b128(vh[i], x.sub(8 * i + 4, 4), mods='offset:1024')
    lab = k.lbl('nostore')
    a.s_lshr_b32('s3', swv, 2); a.s_cmp_eq_u32('s3', ssel); a.s_cbranch_scc0(lab)
    for i in range(2):
        for h in range(2):
            a.buffer_store_dwordx4(x.sub(8 * i + 4 * h, 4), vx, rH, 0, mods=f'offen offset:{2048 * i + 1024 * h} {ST}')
    a.label(lab)
    k.stamp(1)
    a('s_waitcnt vmcnt(0) lgkmcnt(0)\ns_barrier')
    k.stamp(2)
    va = v(2); vb = v()
    g16 = L.shr(vt, lane_, 4)
    kk = L.shl(va[0], g16, 3); r_ = L.bfe(vt2, lane_, 2, 2); kk = L.add(va[0], kk, r_)
    kk = L.lshl_add(va[0], wave_, 7, kk)
    base = L.shl(va[0], kk, 6)
    c1 = L.bfe(vt2, lane_, 1, 1); b3 = L.and_(vt, g16, 1); b3 = L.shl(vt, b3, 1)
    ch0 = L.xor(vt, b3, c1)
    c0 = L.and_(vt2, lane_, 1); c0 = L.shl(vt2, c0, 3)
    t0 = L.lshl_add(va[0], ch0, 4, base); t0 = L.add(va[0], t0, c0)
    t1 = L.xor(va[1], t0, 32)
    for t_, reg in ((0, t0), (1, t1)):
        l = L.tid & 63; w_ = L.tid >> 6
        kref = 128 * w_ + 8 * (l >> 4) + ((l & 15) >> 2)
        ch = (2 * t_ + ((l & 3) >> 1)) ^ (2 * ((kref >> 3) & 1))
        assert (reg.val == kref * 64 + ch * 16 + (l & 1) * 8).all()
    m_ = L.and_(vt, lane_, 15); g16 = L.shr(vt2, lane_, 4)
    ch = L.lshl_add(vb, wave_, 4, g16)
    vbs = v(4)
    for s_ in range(4):
        c_ = L.add(vbs[s_], 4 * s_, ch); c_ = L.xor(vbs[s_], c_, m_)
        c_ = L.shl(vbs[s_], c_, 4); c_ = L.lshl_add(vbs[s_], m_, 11, c_); L.add(vbs[s_], LDS_H, c_)
    A = v(32, 4); B = v(16, 4); acc = v(8, 4)
    for s_ in range(4):
        a.ds_read_b128(B.sub(4 * s_, 4), vbs[s_])
        for t_ in range(2):
            for h in range(2):
                a.ds_read_b64_tr_b16(A.sub(8 * s_ + 4 * t_ + 2 * h, 2), va[t_], mods=f'offset:{LDS_W + (32 * s_ + 4 * h) * 64}')
    a('s_waitcnt lgkmcnt(0)')
    for s_ in range(4):
        for t_ in range(2):
            a.v_mfma_f32_16x16x32_bf16(acc.sub(4 * t_, 4), A.sub(8 * s_ + 4 * t_, 4), B.sub(4 * s_, 4), 0 if s_ == 0 else acc.sub(4 * t_, 4))
    vr = v()
    t = L.shl(vr, wave_, 11); t = L.lshl_add(vr, m_, 7, t); g16 = L.shr(vt2, lane_, 4); t = L.lshl_add(vr, g16, 4, t); L.add(vr, LDS_R, t)
    a.ds_write_b128(vr, acc.sub(0, 4)); a.ds_write_b128(vr, acc.sub(4, 4), mods='offset:64')
    a('s_waitcnt lgkmcnt(0)\ns_barrier')
    L.shl(vr, k.tid, 2)
    pp = v(8)
    for i in range(8): a.ds_read_b32(pp[i], vr, mods=f'offset:{LDS_R + 2048 * i}')
    a('s_waitcnt lgkmcnt(0)')
    for n in (4, 2, 1):
        for i in range(n): a.v_add_f32(pp[i], pp[i], pp[i + n])
    round_bf16(a, pp[0])
    a.ds_write_b32(vr, pp[0], mods=f'offset:{LDS_S}')
    a('s_waitcnt lgkmcnt(0)\ns_barrier')
    k.stamp(3)
    a.s_cmp_ge_u32(swv, 1); a.s_cbranch_scc1(f'L_{k.name}_end')
    sT, sb = s(), s()
    a.s_lshr_b32(sT, sR, 1); a.s_lshl_b32(sT, sT, 11)
    a.s_and_b32(sb, sR, 1)
    labV = k.lbl('v')
    o = v(8, 4); vo = v()
    a.s_cmp_eq_u32(ssel, 0); a.s_cbranch_scc0(labV)
    rK = k.srd(pws, WS_KF, 131072)
    key = L.and_(vt, lane_, 15); c_ = L.bfe(vt2, lane_, 4, 1); t = L.shl(vr, key, 7); t = L.lshl_add(vr, c_, 6, t)
    h_ = L.shr(vo, lane_, 5); L.lshl_add(vr, h_, 4, t)
    a.ds_read_b128(o.sub(0, 4), vr, mods=f'offset:{LDS_S}'); a.ds_read_b128(o.sub(4, 4), vr, mods=f'offset:{LDS_S + 32}')
    t = L.lshl_add(vo, h_, 5, key); t = L.shl(vo, t, 4); L.lshl_add(vo, c_, 10, t)
    a.s_lshl_b32(sb, sb, 8); a.s_add_u32(sT, sT, sb)
    a('s_waitcnt lgkmcnt(0)')
    q = v(2)
    a.v_mul_f32(q[0], o[0], o[0])
    for j in range(1, 8): a.v_fmac_f32(q[0], o[j], o[j])
    for j in range(4): a.v_cvt_pk_bf16_f32(o[j], o[2 * j], o[2 * j + 1])
    a.buffer_store_dwordx4(o.sub(0, 4), vo, rK, sT, mods=f'offen {ST}')
    a.v_mov_b32(q[1], q[0]); a.v_permlane16_swap_b32(q[0], q[1]); a.v_add_f32(q[0], q[0], q[1])
    a.v_mov_b32(q[1], q[0]); a.v_permlane32_swap_b32(q[0], q[1]); a.v_add_f32(q[0], q[0], q[1])
    for m in ('row_ror:1', 'row_ror:2', 'row_ror:4', 'row_ror:8'):
        a.v_max_f32_dpp(q[0], q[0], q[0], mods=f'{m} row_mask:0xf bank_mask:0xf')
    rKM = k.srd(pws, WS_KM, 512)
    a.s_lshl_b32(sb, sR, 2)
    a.v_mov_b32(vr, 0)
    sv = s(2)
    a.v_cmp_eq_u32('vcc', 0, lane); a.s_and_saveexec_b64(sv, 'vcc')
    a.buffer_store_dword(q[0], vr, rKM, sb, mods='offen')
    a.s_branch(f'L_{k.name}_end')
    a.label(labV)
    rV = k.srd(pws, WS_VF, 131072)
    d_ = L.and_(vt, lane_, 31); h_ = L.shr(vt2, lane_, 5); t = L.shl(vr, d_, 2); L.lshl_add(vr, h_, 9, t)
    for t_ in range(8): a.ds_read_b32(o[t_], vr, mods=f'offset:{LDS_S + (8 * (t_ >> 2) + (t_ & 3)) * 128}')
    L.shl(vo, lane_, 4)
    a.s_lshl_b32(sb, sb, 10); a.s_add_u32(sT, sT, sb)
    a('s_waitcnt lgkmcnt(0)')
    for j in range(4): a.v_cvt_pk_bf16_f32(o[j], o[2 * j], o[2 * j + 1])
    a.buffer_store_dwordx4(o.sub(0, 4), vo, rV, sT, mods=f'offen {ST}')
    return k
```

```python
from k12 import *

def gen_k12():
    LDS_R, LDS_S, LDS_H, LDS_W = 0, 16384, 20480, 53248
    LDS_M = 0; LDS_G = 8192
    k = Kern("k2_front_kernel", 512, LDS_W + 65536, 256)
    a, L, v, s = k.a, k.L, k.v, k.s
    k.exit_if_wg_ge(256)
    k.stamp_init(1)
    pc = k.ptr('c'); pwm = k.ptr('wmod'); px = k.ptr('x'); pws = k.ptr('ws')
    pk = k.ptr('wk'); pv = k.ptr('wv'); pq = k.ptr('wq'); pdbg = k.ptr('dbg')
    sR, ssel, st = s(), s(), s()
    a.s_and_b32(sR, 's2', 3); a.s_lshl_b32(sR, sR, 5); a.s_lshr_b32('s3', 's2', 3); a.s_add_u32(sR, sR, 's3')
    a.s_bfe_u32(ssel, 's2', (1 << 16) | 2)
    sx, si, sch, skq = s(), s(), s(), s()
    a.s_lshr_b32(skq, 's2', 6)
    a.s_and_b32(sx, 's2', 7); a.s_lshr_b32(si, 's2', 3); a.s_and_b32(si, si, 7)
    a.s_lshr_b32(sch, si, 1); a.s_lshl_b32(sch, sch, 4); a.s_lshl_b32(sx, sx, 1); a.s_add_u32(sch, sch, sx)
    a.s_and_b32(si, si, 1); a.s_add_u32(sch, sch, si)
    lane, wv, vt, vt2 = v(), v(), v(), v()
    lane_ = L.and_(lane, k.tid, 63); wave_ = L.shr(wv, k.tid, 6)
    swv = s(); L.rfl(swv, wave_)
    vg, vc = v(), v()
    rg = L.shr(vt, k.tid, 2); t1 = L.mul(vg, 12288, rg); t2 = L.and_(vc, k.tid, 3); L.lshl_add(vg, t2, 4, t1); L.shl(vc, rg, 1)
    sgo, sgo2, sco = s(), s(), s()
    a.s_mul_i32(sgo, skq, 256 * 12288); a.s_lshl_b32('s3', sch, 6); a.s_add_u32(sgo, sgo, 's3'); a.s_add_u32(sgo2, sgo, hex(128 * 12288))
    a.s_lshl_b32(sco, skq, 9)
    vx = v(); t = L.shl(vt, wave_, 12); L.lshl_add(vx, lane_, 4, t)
    a.s_lshl_b32(st, sR, 15)
    a('s_waitcnt lgkmcnt(0)')
    rWm = k.srd(pwm, 0, 1024 * 12288); rC = k.srd(pc, 0, 2048)
    GW = v(8, 4); GC = v(2)
    a.buffer_load_dwordx4(GW.sub(0, 4), vg, rWm, sgo, mods='offen'); a.buffer_load_dwordx4(GW.sub(4, 4), vg, rWm, sgo2, mods='offen')
    a.buffer_load_ushort(GC[0], vc, rC, sco, mods='offen'); a.buffer_load_ushort(GC[1], vc, rC, sco, mods='offen offset:256')
    rX = k.srd(px, 0, 32768, dyn_off=st)
    x = v(16, 4)
    for i in range(2):
        for h in range(2):
            a.buffer_load_dwordx4(x.sub(8 * i + 4 * h, 4), vx, rX, 0, mods=f'offen offset:{2048 * i + 1024 * h}')
    rQ = k.srd(pq, 0, 1024 * 2048)
    vq, vqd = v(), v()
    t = L.and_(vq, lane_, 7); t = L.lshl_add(vq, wave_, 3, t); L.shl(vq, t, 7)
    sq = s(); a.s_lshl_b32(sq, 's2', 13)
    sv = s(2)
    a.s_mov_b64(sv, 'exec'); a.s_mov_b64('exec', 255)
    a.buffer_load_dword(vqd, vq, rQ, sq, mods='offen')
    a.s_mov_b64('exec', sv)
    rH = k.srd(pws, WS_H1, 32768, dyn_off=st)
    rM = k.srd(pws, WS_MP1, 4 * 2048 * 4)
    rD = k.srd(pdbg, 0, 256)
    a.s_cmp_eq_u32(ssel, 0)
    pw = s(2); a.s_cselect_b32(pw[0], pk[0], pv[0]); a.s_cselect_b32(pw[1], pk[1], pv[1])
    rW = k.srd(pw, 0, 65536)
    vw = v()
    t = L.shr(vt, lane_, 2); t = L.shl(vw, t, 6)
    u = L.shr(vt, lane_, 5); u = L.shl(vt, u, 1); p_ = L.and_(vt2, lane_, 3); u = L.xor(vt, u, p_)
    L.lshl_add(vw, u, 4, t)
    vm = v(); L.shl(vm, lane_, 5)
    vmp = v(); L.shl(vmp, k.tid, 4)
    vh = v(2)
    for i in range(2):
        r = L.lshl_add(vt, wave_, 1, i); c = L.xor(vt2, lane_, r)
        t = L.shl(vh[i], r, 11); t = L.lshl_add(vh[i], c, 4, t); L.add(vh[i], LDS_H, t)
    va = v(2); vb = v()
    g16 = L.shr(vt, lane_, 4)
    kk = L.shl(va[0], g16, 3); r_ = L.bfe(vt2, lane_, 2, 2); kk = L.add(va[0], kk, r_)
    kk = L.lshl_add(va[0], wave_, 7, kk); base = L.shl(va[0], kk, 6)
    c1 = L.bfe(vt2, lane_, 1, 1); b3 = L.and_(vt, g16, 1); b3 = L.shl(vt, b3, 1)
    ch0 = L.xor(vt, b3, c1); c0 = L.and_(vt2, lane_, 1); c0 = L.shl(vt2, c0, 3)
    t0 = L.lshl_add(va[0], ch0, 4, base); t0 = L.add(va[0], t0, c0); t1 = L.xor(va[1], t0, 32)
    for t_, reg in ((0, t0), (1, t1)):
        l = L.tid & 63; w_ = L.tid >> 6
        kref = 128 * w_ + 8 * (l >> 4) + ((l & 15) >> 2)
        ch = (2 * t_ + ((l & 3) >> 1)) ^ (2 * ((kref >> 3) & 1))
        assert (reg.val == kref * 64 + ch * 16 + (l & 1) * 8).all()
    vm15 = v(); m_ = L.and_(vm15, lane_, 15); g16 = L.shr(vt2, lane_, 4)
    ch = L.lshl_add(vb, wave_, 4, g16)
    vbs = v(4)
    for s_ in range(4):
        c_ = L.add(vbs[s_], 4 * s_, ch); c_ = L.xor(vbs[s_], c_, m_)
        c_ = L.shl(vbs[s_], c_, 4); c_ = L.lshl_add(vbs[s_], m_, 11, c_); L.add(vbs[s_], LDS_H, c_)
    vr = v()
    t = L.shl(vr, wave_, 11); t = L.lshl_add(vr, m_, 7, t); g16 = L.shr(vt2, lane_, 4); t = L.lshl_add(vr, g16, 4, t); L.add(vr, LDS_R, t)
    vga = v()
    t = L.shr(vga, k.tid, 4); t = L.shl(vga, t, 7); t3 = L.and_(vt, k.tid, 3); t = L.lshl_add(vga, t3, 5, t); L.add(vga, LDS_G, t)
    acc = v(8, 4); e = v(2); lo, hi = v(), v()
    k.stamp(4)
    a('s_waitcnt vmcnt(5)')
    k.stamp(5)
    silu_bf16(a, [GC[0], GC[1]], e)
    for i in range(2):
        for j in range(4):
            unpack_bf16(a, lo, hi, GW[4 * i + j])
            if i == 0:
                a.v_mul_f32(acc[2 * j], GC[i], lo); a.v_mul_f32(acc[2 * j + 1], GC[i], hi)
            else:
                a.v_fmac_f32(acc[2 * j], GC[i], lo); a.v_fmac_f32(acc[2 * j + 1], GC[i], hi)
    for m in ('row_ror:4', 'row_ror:8'):
        for j in range(8): a.v_add_f32_dpp(acc[j], acc[j], acc[j], mods=f'{m} row_mask:0xf bank_mask:0xf')
    L.and_(vt, k.tid, 15)
    a.v_cmp_gt_u32('vcc', 4, vt); a.s_and_saveexec_b64(sv, 'vcc')
    a.ds_write_b128(vga, acc.sub(0, 4)); a.ds_write_b128(vga, acc.sub(4, 4), mods='offset:16')
    a.s_mov_b64('exec', sv)
    a('s_waitcnt lgkmcnt(0)\ns_barrier')
    p = v(16, 4); vp = v()
    labN = k.lbl('nopub')
    a.s_cmp_eq_u32(swv, 0); a.s_cbranch_scc0(labN)
    t = L.and_(vp, lane_, 31); t = L.shl(vp, t, 2); th = L.shr(vt, lane_, 5); t = L.lshl_add(vp, th, 11, t); L.add(vp, LDS_G, t)
    for i in range(16): a.ds_read_b32(p[i], vp, mods=f'offset:{128 * i}')
    a('s_waitcnt lgkmcnt(0)')
    for n in (8, 4, 2, 1):
        for i in range(n): a.v_add_f32(p[i], p[i], p[i + n])
    a.v_mov_b32(p[1], p[0]); a.v_permlane32_swap_b32(p[0], p[1]); a.v_add_f32(p[0], p[0], p[1])
    sb = s(); a.s_lshl_b32(sb, skq, 13); a.s_lshl_b32('s3', sch, 7); a.s_add_u32(sb, sb, 's3')
    t = L.and_(vp, lane_, 31); L.shl(vp, t, 2)
    a.s_mov_b64(sv, 'exec'); a.s_mov_b32('exec_lo', -1); a.s_mov_b32('exec_hi', 0)
    a.buffer_store_dword(p[0], vp, rM, sb, mods='offen sc1')
    a('s_waitcnt vmcnt(0)')
    a.s_mov_b64('exec', 1)
    a.v_mov_b32(p[1], 1); a.v_mov_b32(p[2], 's2')
    a.buffer_store_byte(p[1], p[2], rD, 0, mods='offen sc1')
    a.s_mov_b64('exec', sv)
    a.label(labN)
    k.stamp(6)
    f = v(32, 4)
    a('s_waitcnt vmcnt(1)')
    for i in range(2):
        for j in range(8): unpack_bf16(a, f[16 * i + 2 * j], f[16 * i + 2 * j + 1], x[8 * i + j])
    sm_ = v(2); smu = s(2); srs = s(2)
    for i in range(2):
        a.v_add_f32(sm_[i], f[16 * i], f[16 * i + 1])
        for j in range(2, 16): a.v_add_f32(sm_[i], sm_[i], f[16 * i + j])
        a.v_mul_f32(sm_[i], fhex(1 / 1024), sm_[i])
    wave_sum_dpp(a, [sm_[0], sm_[1]])
    for i in range(2): a.v_readlane_b32(smu[i], sm_[i], 63)
    for i in range(2):
        for j in range(16): a.v_subrev_f32(f[16 * i + j], smu[i], f[16 * i + j])
    for i in range(2):
        a.v_mul_f32(sm_[i], f[16 * i], f[16 * i])
        for j in range(1, 16): a.v_fmac_f32(sm_[i], f[16 * i + j], f[16 * i + j])
        a.v_mul_f32(sm_[i], fhex(1 / 1024), sm_[i])
    wave_sum_dpp(a, [sm_[0], sm_[1]])
    for i in range(2): a.v_add_f32(sm_[i], fhex(1e-5), sm_[i])
    for i in range(2): a.v_rsq_f32(sm_[i], sm_[i])
    for i in range(2): a.v_readlane_b32(srs[i], sm_[i], 63)
    for i in range(2):
        for j in range(16): a.v_mul_f32(f[16 * i + j], srs[i], f[16 * i + j])
    sm, so = s(), s()
    a.s_lshl_b32(so, swv, 13)
    for j in range(8):
        a.s_add_u32('m0', so, LDS_W + 1024 * j)
        if j: a.s_add_u32(sm, so, 1024 * j)
        a.buffer_load_dwordx4(vw, rW, sm if j else so, mods='offen lds')
    k.stamp(7)
    labW = k.lbl('polled')
    a.s_cmp_eq_u32(swv, 0); a.s_cbranch_scc0(labW)
    vf, vfo = v(), v()
    L.shl(vfo, lane_, 2)
    sone = s(); a.s_mov_b32(sone, '0x01010101')
    labP = k.lbl('poll')
    sspin = s(); a.s_mov_b32(sspin, 50000)
    a.label(labP)
    a.buffer_load_dword(vf, vfo, rD, 0, mods='offen sc1')
    a('s_waitcnt vmcnt(0)')
    a.v_cmp_ne_u32('vcc', sone, vf)
    a.s_cmp_eq_u64('vcc', 0)
    labQ = k.lbl('pollok')
    a.s_cbranch_scc1(labQ)
    a('s_sleep 2')
    a.s_sub_u32(sspin, sspin, 1); a.s_cmp_lg_u32(sspin, 0); a.s_cbranch_scc1(labP)
    a.label(labQ)
    a.label(labW)
    a('s_barrier')
    k.stamp(8)
    MP = p; smp = s(4)
    for q in range(4):
        a.s_mov_b32(smp[q], 8192 * q)
        a.buffer_load_dwordx4(MP.sub(4 * q, 4), vmp, rM, smp[q], mods='offen sc1')
    a('s_waitcnt vmcnt(0)')
    for j in range(4):
        a.v_add_f32(MP[j], MP[j], MP[4 + j]); a.v_add_f32(MP[8 + j], MP[8 + j], MP[12 + j]); a.v_add_f32(MP[j], MP[j], MP[8 + j])
        round_bf16(a, MP[j])
    labg = k.lbl('noadd')
    a.s_cmp_ge_u32(swv, 4); a.s_cbranch_scc0(labg)
    for j in range(4):
        a.v_add_f32(MP[j], 1.0, MP[j]); round_bf16(a, MP[j])
    a.label(labg)
    a.ds_write_b128(vmp, MP.sub(0, 4), mods=f'offset:{LDS_M}')
    a('s_waitcnt lgkmcnt(0)\ns_barrier')
    sa = v(16, 4); g = v(16, 4)
    for q, (dst, off) in enumerate(((sa.sub(0, 8), 0), (sa.sub(8, 8), 2048), (g.sub(0, 8), 4096), (g.sub(8, 8), 6144))):
        a.ds_read_b128(dst.sub(0, 4), vm, mods=f'offset:{LDS_M + off}'); a.ds_read_b128(dst.sub(4, 4), vm, mods=f'offset:{LDS_M + off + 16}')
    a('s_waitcnt lgkmcnt(0)')
    for i in range(2):
        for j in range(16): a.v_fma_f32(f[16 * i + j], f[16 * i + j], g[j], sa[j])
        for j in range(8): a.v_cvt_pk_bf16_f32(x[8 * i + j], f[16 * i + 2 * j], f[16 * i + 2 * j + 1])
    for i in range(2):
        a.ds_write_b128(vh[i], x.sub(8 * i, 4)); a.ds_write_b128(vh[i], x.sub(8 * i + 4, 4), mods='offset:1024')
    lab = k.lbl('nostore')
    a.s_lshr_b32('s3', swv, 2); a.s_cmp_eq_u32('s3', ssel); a.s_cbranch_scc0(lab)
    for i in range(2):
        for h in range(2):
            a.buffer_store_dwordx4(x.sub(8 * i + 4 * h, 4), vx, rH, 0, mods=f'offen offset:{2048 * i + 1024 * h} {ST}')
    a.label(lab)
    k.stamp(1)
    a('s_waitcnt lgkmcnt(0)\ns_barrier')
    k.stamp(2)
    A = f; B = sa; acc2 = g.sub(0, 8)
    for s_ in range(4):
        a.ds_read_b128(B.sub(4 * s_, 4), vbs[s_])
        for t_ in range(2):
            for h in range(2):
                a.ds_read_b64_tr_b16(A.sub(8 * s_ + 4 * t_ + 2 * h, 2), va[t_], mods=f'offset:{LDS_W + (32 * s_ + 4 * h) * 64}')
    for s_ in range(4):
        a(f's_waitcnt lgkmcnt({5 * (3 - s_)})')
        for t_ in range(2):
            a.v_mfma_f32_16x16x32_bf16(acc2.sub(4 * t_, 4), A.sub(8 * s_ + 4 * t_, 4), B.sub(4 * s_, 4), 0 if s_ == 0 else acc2.sub(4 * t_, 4))
    a.ds_write_b128(vr, acc2.sub(0, 4)); a.ds_write_b128(vr, acc2.sub(4, 4), mods='offset:64')
    a('s_waitcnt lgkmcnt(0)\ns_barrier')
    vr2 = v(); L.shl(vr2, k.tid, 2)
    pp = g.sub(8, 8)
    for i in range(8): a.ds_read_b32(pp[i], vr2, mods=f'offset:{LDS_R + 2048 * i}')
    a('s_waitcnt lgkmcnt(0)')
    for n in (4, 2, 1):
        for i in range(n): a.v_add_f32(pp[i], pp[i], pp[i + n])
    round_bf16(a, pp[0])
    a.ds_write_b32(vr2, pp[0], mods=f'offset:{LDS_S}')
    a('s_waitcnt lgkmcnt(0)\ns_barrier')
    k.stamp(3)
    a.s_cmp_ge_u32(swv, 1); a.s_cbranch_scc1(f'L_{k.name}_end')
    sT, sb2 = s(), s()
    a.s_lshr_b32(sT, sR, 1); a.s_lshl_b32(sT, sT, 11)
    a.s_and_b32(sb2, sR, 1)
    labV = k.lbl('v')
    o = sa.sub(0, 8); vo = v()
    a.s_cmp_eq_u32(ssel, 0); a.s_cbranch_scc0(labV)
    rK = k.srd(pws, WS_KF, 131072, dst=rX)
    key = L.and_(vt, lane_, 15); c_ = L.bfe(vt2, lane_, 4, 1); t = L.shl(vr, key, 7); t = L.lshl_add(vr, c_, 6, t)
    h_ = L.shr(vo, lane_, 5); L.lshl_add(vr, h_, 4, t)
    a.ds_read_b128(o.sub(0, 4), vr, mods=f'offset:{LDS_S}'); a.ds_read_b128(o.sub(4, 4), vr, mods=f'offset:{LDS_S + 32}')
    t = L.lshl_add(vo, h_, 5, key); t = L.shl(vo, t, 4); L.lshl_add(vo, c_, 10, t)
    a.s_lshl_b32(sb2, sb2, 8); a.s_add_u32(sT, sT, sb2)
    a('s_waitcnt lgkmcnt(0)')
    q = v(2)
    a.v_mul_f32(q[0], o[0], o[0])
    for j in range(1, 8): a.v_fmac_f32(q[0], o[j], o[j])
    for j in range(4): a.v_cvt_pk_bf16_f32(o[j], o[2 * j], o[2 * j + 1])
    a.buffer_store_dwordx4(o.sub(0, 4), vo, rK, sT, mods=f'offen {ST}')
    a.v_mov_b32(q[1], q[0]); a.v_permlane16_swap_b32(q[0], q[1]); a.v_add_f32(q[0], q[0], q[1])
    a.v_mov_b32(q[1], q[0]); a.v_permlane32_swap_b32(q[0], q[1]); a.v_add_f32(q[0], q[0], q[1])
    for m in ('row_ror:1', 'row_ror:2', 'row_ror:4', 'row_ror:8'):
        a.v_max_f32_dpp(q[0], q[0], q[0], mods=f'{m} row_mask:0xf bank_mask:0xf')
    rKM = k.srd(pws, WS_KM, 512, dst=rWm)
    a.s_lshl_b32(sb2, sR, 2)
    a.v_mov_b32(vr, 0)
    a.v_cmp_eq_u32('vcc', 0, lane); a.s_and_saveexec_b64(sv, 'vcc')
    a.buffer_store_dword(q[0], vr, rKM, sb2, mods='offen')
    a.s_branch(f'L_{k.name}_end')
    a.label(labV)
    rV = k.srd(pws, WS_VF, 131072, dst=rX)
    d_ = L.and_(vt, lane_, 31); h_ = L.shr(vt2, lane_, 5); t = L.shl(vr, d_, 2); L.lshl_add(vr, h_, 9, t)
    for t_ in range(8): a.ds_read_b32(o[t_], vr, mods=f'offset:{LDS_S + (8 * (t_ >> 2) + (t_ & 3)) * 128}')
    L.shl(vo, lane_, 4)
    a.s_lshl_b32(sb2, sb2, 10); a.s_add_u32(sT, sT, sb2)
    a('s_waitcnt lgkmcnt(0)')
    for j in range(4): a.v_cvt_pk_bf16_f32(o[j], o[2 * j], o[2 * j + 1])
    a.buffer_store_dwordx4(o.sub(0, 4), vo, rV, sT, mods=f'offen {ST}')
    return k
```

```python
from k12 import *

def gen_k2opt():
    LDS_R, LDS_S, LDS_H, LDS_W = 0, 16384, 20480, 53248
    LDS_M = 0; LDS_G = 8192
    k = Kern("k2_ln_kv_kernel", 512, LDS_W + 65536, 256)
    a, L, v, s = k.a, k.L, k.v, k.s
    k.exit_if_wg_ge(256)
    k.stamp_init(1)
    px = k.ptr('x'); pws = k.ptr('ws'); pk = k.ptr('wk'); pv = k.ptr('wv')
    sR, ssel, st = s(), s(), s()
    a.s_and_b32(sR, 's2', 3); a.s_lshl_b32(sR, sR, 5); a.s_lshr_b32('s3', 's2', 3); a.s_add_u32(sR, sR, 's3')
    a.s_bfe_u32(ssel, 's2', (1 << 16) | 2)
    lane, wv, vt, vt2 = v(), v(), v(), v()
    lane_ = L.and_(lane, k.tid, 63); wave_ = L.shr(wv, k.tid, 6)
    swv = s(); L.rfl(swv, wave_)
    vx = v(); t = L.shl(vt, wave_, 12); L.lshl_add(vx, lane_, 4, t)
    a.s_lshl_b32(st, sR, 15)
    a('s_waitcnt lgkmcnt(0)')
    rX = k.srd(px, 0, 32768, dyn_off=st)
    x = v(16, 4)
    for i in range(2):
        for h in range(2):
            a.buffer_load_dwordx4(x.sub(8 * i + 4 * h, 4), vx, rX, 0, mods=f'offen offset:{2048 * i + 1024 * h}')
    rM = k.srd(pws, WS_MP1, 4 * 2048 * 4)
    vmp = v(); L.shl(vmp, k.tid, 4)
    MP = v(16, 4); smp = s(4)
    for q in range(4):
        a.s_mov_b32(smp[q], 8192 * q)
        a.buffer_load_dwordx4(MP.sub(4 * q, 4), vmp, rM, smp[q], mods='offen')
    sv = s(2)
    rH = k.srd(pws, WS_H1, 32768, dyn_off=st)
    a.s_cmp_eq_u32(ssel, 0)
    pw = s(2); a.s_cselect_b32(pw[0], pk[0], pv[0]); a.s_cselect_b32(pw[1], pk[1], pv[1])
    rW = k.srd(pw, 0, 65536)
    vw = v()
    t = L.shr(vt, lane_, 2); t = L.shl(vw, t, 6)
    u = L.shr(vt, lane_, 5); u = L.shl(vt, u, 1); p_ = L.and_(vt2, lane_, 3); u = L.xor(vt, u, p_)
    L.lshl_add(vw, u, 4, t)
    vm = v(); L.shl(vm, lane_, 5)
    vh = v(2)
    for i in range(2):
        r = L.lshl_add(vt, wave_, 1, i); c = L.xor(vt2, lane_, r)
        t = L.shl(vh[i], r, 11); t = L.lshl_add(vh[i], c, 4, t); L.add(vh[i], LDS_H, t)
    va = v(2); vb = v()
    g16 = L.shr(vt, lane_, 4)
    kk = L.shl(va[0], g16, 3); r_ = L.bfe(vt2, lane_, 2, 2); kk = L.add(va[0], kk, r_)
    kk = L.lshl_add(va[0], wave_, 7, kk); base = L.shl(va[0], kk, 6)
    c1 = L.bfe(vt2, lane_, 1, 1); b3 = L.and_(vt, g16, 1); b3 = L.shl(vt, b3, 1)
    ch0 = L.xor(vt, b3, c1); c0 = L.and_(vt2, lane_, 1); c0 = L.shl(vt2, c0, 3)
    t0 = L.lshl_add(va[0], ch0, 4, base); t0 = L.add(va[0], t0, c0); t1 = L.xor(va[1], t0, 32)
    for t_, reg in ((0, t0), (1, t1)):
        l = L.tid & 63; w_ = L.tid >> 6
        kref = 128 * w_ + 8 * (l >> 4) + ((l & 15) >> 2)
        ch = (2 * t_ + ((l & 3) >> 1)) ^ (2 * ((kref >> 3) & 1))
        assert (reg.val == kref * 64 + ch * 16 + (l & 1) * 8).all()
    vm15 = v(); m_ = L.and_(vm15, lane_, 15); g16 = L.shr(vt2, lane_, 4)
    ch = L.lshl_add(vb, wave_, 4, g16)
    vbs = v(4)
    for s_ in range(4):
        c_ = L.add(vbs[s_], 4 * s_, ch); c_ = L.xor(vbs[s_], c_, m_)
        c_ = L.shl(vbs[s_], c_, 4); c_ = L.lshl_add(vbs[s_], m_, 11, c_); L.add(vbs[s_], LDS_H, c_)
    vr = v()
    t = L.shl(vr, wave_, 11); t = L.lshl_add(vr, m_, 7, t); g16 = L.shr(vt2, lane_, 4); t = L.lshl_add(vr, g16, 4, t); L.add(vr, LDS_R, t)
    f = v(32, 4)
    k.stamp(4)
    a('s_waitcnt vmcnt(4)')
    k.stamp(5)
    for i in range(2):
        for j in range(8): unpack_bf16(a, f[16 * i + 2 * j], f[16 * i + 2 * j + 1], x[8 * i + j])
    sm_ = v(2); smu = s(2); srs = s(2)
    for i in range(2):
        a.v_add_f32(sm_[i], f[16 * i], f[16 * i + 1])
        for j in range(2, 16): a.v_add_f32(sm_[i], sm_[i], f[16 * i + j])
        a.v_mul_f32(sm_[i], fhex(1 / 1024), sm_[i])
    wave_sum_dpp(a, [sm_[0], sm_[1]])
    for i in range(2): a.v_readlane_b32(smu[i], sm_[i], 63)
    for i in range(2):
        for j in range(16): a.v_subrev_f32(f[16 * i + j], smu[i], f[16 * i + j])
    for i in range(2):
        a.v_mul_f32(sm_[i], f[16 * i], f[16 * i])
        for j in range(1, 16): a.v_fmac_f32(sm_[i], f[16 * i + j], f[16 * i + j])
        a.v_mul_f32(sm_[i], fhex(1 / 1024), sm_[i])
    wave_sum_dpp(a, [sm_[0], sm_[1]])
    for i in range(2): a.v_add_f32(sm_[i], fhex(1e-5), sm_[i])
    for i in range(2): a.v_rsq_f32(sm_[i], sm_[i])
    for i in range(2): a.v_readlane_b32(srs[i], sm_[i], 63)
    for i in range(2):
        for j in range(16): a.v_mul_f32(f[16 * i + j], srs[i], f[16 * i + j])
    sm, so = s(), s()
    a.s_lshl_b32(so, swv, 13)
    for j in range(8):
        a.s_add_u32('m0', so, LDS_W + 1024 * j)
        if j: a.s_add_u32(sm, so, 1024 * j)
        a.buffer_load_dwordx4(vw, rW, sm if j else so, mods='offen lds')
    k.stamp(7)
    a('s_waitcnt vmcnt(8)')
    for j in range(4):
        a.v_add_f32(MP[j], MP[j], MP[4 + j]); a.v_add_f32(MP[8 + j], MP[8 + j], MP[12 + j]); a.v_add_f32(MP[j], MP[j], MP[8 + j])
        round_bf16(a, MP[j])
    labg = k.lbl('noadd')
    a.s_cmp_ge_u32(swv, 4); a.s_cbranch_scc0(labg)
    for j in range(4):
        a.v_add_f32(MP[j], 1.0, MP[j]); round_bf16(a, MP[j])
    a.label(labg)
    a.ds_write_b128(vmp, MP.sub(0, 4), mods=f'offset:{LDS_M}')
    a('s_waitcnt lgkmcnt(0)\ns_barrier')
    sa = v(16, 4); g = v(16, 4)
    for q, (dst, off) in enumerate(((sa.sub(0, 8), 0), (sa.sub(8, 8), 2048), (g.sub(0, 8), 4096), (g.sub(8, 8), 6144))):
        a.ds_read_b128(dst.sub(0, 4), vm, mods=f'offset:{LDS_M + off}'); a.ds_read_b128(dst.sub(4, 4), vm, mods=f'offset:{LDS_M + off + 16}')
    a('s_waitcnt lgkmcnt(0)')
    for i in range(2):
        for j in range(16): a.v_fma_f32(f[16 * i + j], f[16 * i + j], g[j], sa[j])
        for j in range(8): a.v_cvt_pk_bf16_f32(x[8 * i + j], f[16 * i + 2 * j], f[16 * i + 2 * j + 1])
    for i in range(2):
        a.ds_write_b128(vh[i], x.sub(8 * i, 4)); a.ds_write_b128(vh[i], x.sub(8 * i + 4, 4), mods='offset:1024')
    lab = k.lbl('nostore')
    a.s_lshr_b32('s3', swv, 2); a.s_cmp_eq_u32('s3', ssel); a.s_cbranch_scc0(lab)
    for i in range(2):
        for h in range(2):
            a.buffer_store_dwordx4(x.sub(8 * i + 4 * h, 4), vx, rH, 0, mods=f'offen offset:{2048 * i + 1024 * h} {ST}')
    a('s_waitcnt vmcnt(4)')
    lab3 = k.lbl('wdone'); a.s_branch(lab3)
    a.label(lab)
    a('s_waitcnt vmcnt(0)')
    a.label(lab3)
    k.stamp(1)
    a('s_waitcnt lgkmcnt(0)\ns_barrier')
    k.stamp(2)
    A = f; B = sa; acc2 = g.sub(0, 8)
    for s_ in range(4):
        a.ds_read_b128(B.sub(4 * s_, 4), vbs[s_])
        for t_ in range(2):
            for h in range(2):
                a.ds_read_b64_tr_b16(A.sub(8 * s_ + 4 * t_ + 2 * h, 2), va[t_], mods=f'offset:{LDS_W + (32 * s_ + 4 * h) * 64}')
    for s_ in range(4):
        a(f's_waitcnt lgkmcnt({5 * (3 - s_)})')
        for t_ in range(2):
            a.v_mfma_f32_16x16x32_bf16(acc2.sub(4 * t_, 4), A.sub(8 * s_ + 4 * t_, 4), B.sub(4 * s_, 4), 0 if s_ == 0 else acc2.sub(4 * t_, 4))
    a.ds_write_b128(vr, acc2.sub(0, 4)); a.ds_write_b128(vr, acc2.sub(4, 4), mods='offset:64')
    a('s_waitcnt lgkmcnt(0)\ns_barrier')
    vr2 = v(); L.shl(vr2, k.tid, 2)
    pp = g.sub(8, 8)
    for i in range(8): a.ds_read_b32(pp[i], vr2, mods=f'offset:{LDS_R + 2048 * i}')
    a('s_waitcnt lgkmcnt(0)')
    for n in (4, 2, 1):
        for i in range(n): a.v_add_f32(pp[i], pp[i], pp[i + n])
    round_bf16(a, pp[0])
    a.ds_write_b32(vr2, pp[0], mods=f'offset:{LDS_S}')
    a('s_waitcnt lgkmcnt(0)\ns_barrier')
    k.stamp(3)
    a.s_cmp_ge_u32(swv, 1); a.s_cbranch_scc1(f'L_{k.name}_end')
    sT, sb2 = s(), s()
    a.s_lshr_b32(sT, sR, 1); a.s_lshl_b32(sT, sT, 11)
    a.s_and_b32(sb2, sR, 1)
    labV = k.lbl('v')
    o = sa.sub(0, 8); vo = v()
    a.s_cmp_eq_u32(ssel, 0); a.s_cbranch_scc0(labV)
    rK = k.srd(pws, WS_KF, 131072, dst=rX)
    key = L.and_(vt, lane_, 15); c_ = L.bfe(vt2, lane_, 4, 1); t = L.shl(vr, key, 7); t = L.lshl_add(vr, c_, 6, t)
    h_ = L.shr(vo, lane_, 5); L.lshl_add(vr, h_, 4, t)
    a.ds_read_b128(o.sub(0, 4), vr, mods=f'offset:{LDS_S}'); a.ds_read_b128(o.sub(4, 4), vr, mods=f'offset:{LDS_S + 32}')
    t = L.lshl_add(vo, h_, 5, key); t = L.shl(vo, t, 4); L.lshl_add(vo, c_, 10, t)
    a.s_lshl_b32(sb2, sb2, 8); a.s_add_u32(sT, sT, sb2)
    a('s_waitcnt lgkmcnt(0)')
    q = v(2)
    a.v_mul_f32(q[0], o[0], o[0])
    for j in range(1, 8): a.v_fmac_f32(q[0], o[j], o[j])
    for j in range(4): a.v_cvt_pk_bf16_f32(o[j], o[2 * j], o[2 * j + 1])
    a.buffer_store_dwordx4(o.sub(0, 4), vo, rK, sT, mods=f'offen {ST}')
    a.v_mov_b32(q[1], q[0]); a.v_permlane16_swap_b32(q[0], q[1]); a.v_add_f32(q[0], q[0], q[1])
    a.v_mov_b32(q[1], q[0]); a.v_permlane32_swap_b32(q[0], q[1]); a.v_add_f32(q[0], q[0], q[1])
    for m in ('row_ror:1', 'row_ror:2', 'row_ror:4', 'row_ror:8'):
        a.v_max_f32_dpp(q[0], q[0], q[0], mods=f'{m} row_mask:0xf bank_mask:0xf')
    rKM = k.srd(pws, WS_KM, 512, dst=rM)
    a.s_lshl_b32(sb2, sR, 2)
    a.v_mov_b32(vr, 0)
    a.v_cmp_eq_u32('vcc', 0, lane); a.s_and_saveexec_b64(sv, 'vcc')
    a.buffer_store_dword(q[0], vr, rKM, sb2, mods='offen')
    a.s_branch(f'L_{k.name}_end')
    a.label(labV)
    rV = k.srd(pws, WS_VF, 131072, dst=rX)
    d_ = L.and_(vt, lane_, 31); h_ = L.shr(vt2, lane_, 5); t = L.shl(vr, d_, 2); L.lshl_add(vr, h_, 9, t)
    for t_ in range(8): a.ds_read_b32(o[t_], vr, mods=f'offset:{LDS_S + (8 * (t_ >> 2) + (t_ & 3)) * 128}')
    L.shl(vo, lane_, 4)
    a.s_lshl_b32(sb2, sb2, 10); a.s_add_u32(sT, sT, sb2)
    a('s_waitcnt lgkmcnt(0)')
    for j in range(4): a.v_cvt_pk_bf16_f32(o[j], o[2 * j], o[2 * j + 1])
    a.buffer_store_dwordx4(o.sub(0, 4), vo, rV, sT, mods=f'offen {ST}')
    return k
```

```python
from gemm import *
import os
from k12 import ST

def xcd_tile(k, px, mx, nx):
    a, s = k.a, k.s
    sx, si, smt, snt = s(), s(), s(), s()
    a.s_and_b32(sx, 's2', 7); a.s_lshr_b32(si, 's2', 3)
    a.s_and_b32(smt, sx, px - 1); a.s_mul_i32(smt, smt, mx); a.s_and_b32('s3', si, mx - 1); a.s_add_u32(smt, smt, 's3')
    a.s_lshr_b32(snt, sx, int(np.log2(px))); a.s_mul_i32(snt, snt, nx); a.s_lshr_b32('s3', si, int(np.log2(mx))); a.s_add_u32(snt, snt, 's3')
    return smt, snt

def roles(k):
    L, v, s = k.L, k.v, k.s
    lane, wv, w4 = v(), v(), v()
    lane_ = L.and_(lane, k.tid, 63); wave_ = L.shr(wv, k.tid, 6); w4_ = L.and_(w4, wave_, 3)
    swv = s(); L.rfl(swv, wave_)
    sw4 = s(); k.a.s_and_b32(sw4, swv, 3)
    return lane_, wave_, w4_, swv, sw4

def dpp_allreduce16(a, regs, op='v_add_f32_dpp'):
    for m in ('row_ror:8', 'row_ror:4', 'row_ror:2', 'row_ror:1'):
        for r in regs: a.emit(op, r, r, r, mods=f'{m} row_mask:0xf bank_mask:0xf')

def gen_proj(which):
    BM, BN = 64, 128
    if which == 'wo':
        name, kidx, K, ldx, NS = 'k4_wo_kernel', 3, 1024, 2048, 6
    else:
        name, kidx, K, ldx, NS = 'k6_g2_kernel', 5, 3584, 7168, 6
    k = Kern(name, 512, NS * (BM * 128 + 64 * BN * 2) + 2048, 256)
    a, L, v, s = k.a, k.L, k.v, k.s
    k.exit_if_wg_ge(256)
    k.stamp_init(kidx)
    pws = k.ptr('ws'); pw = k.ptr('wo' if which == 'wo' else 'w2'); pres = k.ptr('x') if which == 'wo' else None
    pout = k.ptr('out') if which == 'g2' else None; pb2 = k.ptr('b2') if which == 'g2' else None
    smt, snt = xcd_tile(k, 4, 8, 4)
    lane_, wave_, w4_, swv, sw4 = roles(k)
    G = Gemm(k, BM, BN, 2, 2, K // 64, NS, ldx, 2048)
    G.full = os.environ.get('FULL', '1') == '1'
    vrow, vch, vt = v(), v(), v()
    row_ = L.shr(vrow, k.tid, 4); ch_ = L.and_(vch, k.tid, 15)
    vres = v(); t = L.shl(vres, row_, 11); L.lshl_add(vres, ch_, 4, t)
    vcol = v(); L.shl(vcol, ch_, 5)
    sro, sco, st = s(), s(), s()
    a.s_lshl_b32(sro, smt, 6 + 11)
    a.s_lshl_b32(sco, snt, 8)
    a.s_add_u32(st, sro, sco)
    a('s_waitcnt lgkmcnt(0)')
    if which == 'wo':
        rRes = k.srd(pres, 0, 64 * 2048, dyn_off=st); rDst = k.srd(pws, WS_X1, 64 * 2048, dyn_off=st)
    else:
        rRes = k.srd(pws, WS_X1, 64 * 2048, dyn_off=st); rDst = k.srd(pout, 0, 64 * 2048, dyn_off=st)
    a.s_sub_u32(rRes[2], 64 * 2048, sco); a.s_sub_u32(rDst[2], 64 * 2048, sco)
    rM = k.srd(pws, WS_MOD, 6144 * 4)
    res = v(8, 4)
    s64k = s(); a.s_mov_b32(s64k, 32 * 2048)
    a.buffer_load_dwordx4(res.sub(0, 4), vres, rRes, 0, mods='offen'); a.buffer_load_dwordx4(res.sub(4, 4), vres, rRes, s64k, mods='offen')
    scol = s(); a.s_lshl_b32(scol, snt, 9)
    def loadvec(dst, blk):
        so = s(); a.s_add_u32(so, scol, blk * 4096)
        a.buffer_load_dwordx4(dst.sub(0, 4), vcol, rM, so, mods='offen'); a.buffer_load_dwordx4(dst.sub(4, 4), vcol, rM, so, mods='offen offset:16')
    gate = v(8, 4)
    LDS_MV = NS * (BM * 128 + 64 * BN * 2)
    if which == 'wo':
        g2 = v(8, 4); sbv = v(8, 4)
        rP2 = k.srd(pws, WS_MP2, 4 * 4096 * 4)
        vp2, MPv = v(), v(4)
        vec_ = L.shr(vt, k.tid, 7); col_ = L.and_(vp2, k.tid, 127); t = L.shl(vp2, col_, 2); L.lshl_add(vp2, vec_, 12, t)
        sp2 = s(4)
        for q in range(4):
            a.s_add_u32(sp2[q], scol, 16384 * q)
            a.buffer_load_dword(MPv[q], vp2, rP2, sp2[q], mods='offen')
    else:
        loadvec(gate, 5)
        b2 = v(4, 4); rB = k.srd(pb2, 0, 2048); vb = v(); L.shl(vb, ch_, 4)
        a.buffer_load_dwordx4(b2, vb, rB, sco, mods='offen')
    if which == 'wo':
        rX = k.srd(pws, WS_O, 64 * 2048, dyn_off=sro)
        rW = k.srd(pw, 0, 1024 * 2048, dyn_off=sco); a.s_sub_u32(rW[2], 1024 * 2048, sco)
    else:
        sx = s(); a.s_mul_i32(sx, smt, 64 * 7168)
        rX = k.srd(pws, WS_HH, 64 * 7168, dyn_off=sx)
        rW = k.srd(pw, 0, 3584 * 2048, dyn_off=sco); a.s_sub_u32(rW[2], 3584 * 2048, sco)
    mk = v.mark()
    labL, labE = k.lbl('loader'), k.lbl('epi')
    a.s_cmp_ge_u32(swv, 4); a.s_cbranch_scc1(labL)
    a('s_setprio 1')
    G.consumer_setup(lane_, w4_)
    G.consumer_run()
    k.stamp(1)
    RS = 528
    va, vt2 = v(), v()
    m_ = L.and_(vt, lane_, 15); wm = L.shr(vt2, w4_, 1); r = L.lshl_add(vt, wm, 5, m_); b = L.mul(va, RS, r)
    g16 = L.shr(vt, lane_, 4); b = L.lshl_add(va, g16, 4, b); wn = L.and_(vt2, w4_, 1); L.lshl_add(va, wn, 8, b)
    for m in range(G.mt):
        for t in range(G.nt):
            a.ds_write_b128(va, G.acc.sub(4 * (m * G.nt + t), 4), mods=f'offset:{16 * m * RS + 64 * t}')
    a('s_waitcnt lgkmcnt(0)')
    a.s_branch(labE)
    hi_c = v.hi
    v.release(mk)
    a.label(labL)
    G.loader_setup(lane_, w4_, rX, rW)
    G.loader_run(sw4)
    k.stamp(1)
    a.label(labE)
    v.release(mk)
    if which == 'wo':
        a('s_waitcnt vmcnt(0)')
        a.v_add_f32(MPv[0], MPv[0], MPv[1]); a.v_add_f32(MPv[2], MPv[2], MPv[3]); a.v_add_f32(MPv[0], MPv[0], MPv[2])
        round_bf16(a, MPv[0])
        labn = k.lbl('noadd')
        a.s_and_b32('s3', swv, 6); a.s_cmp_eq_u32('s3', 4); a.s_cbranch_scc0(labn)
        a.v_add_f32(MPv[0], 1.0, MPv[0]); round_bf16(a, MPv[0])
        a.label(labn)
        vmv = v(); t = L.shl(vmv, k.tid, 2)
        a.ds_write_b32(vmv, MPv[0], mods=f'offset:{LDS_MV}') if LDS_MV < 65536 else None
        if LDS_MV >= 65536:
            L.add(vmv, LDS_MV, t); a.ds_write_b32(vmv, MPv[0])
        labm = k.lbl('nomod')
        a.s_cmp_eq_u32(smt, 0); a.s_cbranch_scc0(labm)
        a.buffer_store_dword(MPv[0], vp2, rM, sp2[0], mods='offen offset:0') if False else None
        smo = s(); a.s_add_u32(smo, scol, 8192)
        a.buffer_store_dword(MPv[0], vp2, rM, smo, mods='offen')
        a.label(labm)
        a('s_waitcnt lgkmcnt(0)')
    a('s_barrier')
    if which == 'wo':
        vrd = v(); t = L.shl(vrd, ch_, 5); L.add(vrd, LDS_MV, t)
        for dst, vec in ((gate, 0), (sbv, 1), (g2, 2)):
            a.ds_read_b128(dst.sub(0, 4), vrd, mods=f'offset:{512 * vec}'); a.ds_read_b128(dst.sub(4, 4), vrd, mods=f'offset:{512 * vec + 16}')
    va = v(); f = v(16, 4)
    b = L.mul(va, RS, row_); L.lshl_add(va, ch_, 5, b)
    for p in range(2):
        a.ds_read_b128(f.sub(8 * p, 4), va, mods=f'offset:{32 * p * RS}'); a.ds_read_b128(f.sub(8 * p + 4, 4), va, mods=f'offset:{32 * p * RS + 16}')
    xr = v(16, 2)
    a('s_waitcnt vmcnt(0)')
    for p in range(2):
        for j in range(4): unpack_bf16(a, xr[8 * p + 2 * j], xr[8 * p + 2 * j + 1], res[4 * p + j])
    if which == 'g2':
        bb = v(8)
        for j in range(4): unpack_bf16(a, bb[2 * j], bb[2 * j + 1], b2[j])
    a('s_waitcnt lgkmcnt(0)')
    o = v(8, 4)
    for p in range(2):
        for j in range(8):
            if which == 'g2': a.v_add_f32(f[8 * p + j], f[8 * p + j], bb[j])
            a.v_fma_f32(f[8 * p + j], f[8 * p + j], gate[j], xr[8 * p + j])
        for j in range(4): a.v_cvt_pk_bf16_f32(o[4 * p + j], f[8 * p + 2 * j], f[8 * p + 2 * j + 1])
    stp = ST if which == 'wo' else ''
    a.buffer_store_dwordx4(o.sub(0, 4), vres, rDst, 0, mods=f'offen {stp}'); a.buffer_store_dwordx4(o.sub(4, 4), vres, rDst, s64k, mods=f'offen {stp}')
    if which == 'wo':
        S = v(16, 4)
        zg = v(); ZG = v(16, 2); og = v(8, 4)
        rXG = k.srd(pws, WS_XG, 64 * 2048, dyn_off=st); a.s_sub_u32(rXG[2], 64 * 2048, sco)
        for p in range(2):
            for j in range(4): unpack_bf16(a, xr[8 * p + 2 * j], xr[8 * p + 2 * j + 1], o[4 * p + j])
            Sp = S.sub(8 * p, 8)
            for j in range(8):
                z = xr[8 * p + j]
                zg = ZG[8 * p + j]
                a.v_mul_f32(zg, z, g2[j])
                if j == 0:
                    a.v_mov_b32(Sp[0], z); a.v_mul_f32(Sp[1], z, z); a.v_mov_b32(Sp[2], zg); a.v_mul_f32(Sp[3], zg, zg)
                    a.v_mul_f32(Sp[4], zg, g2[j]); a.v_mul_f32(Sp[5], zg, sbv[j])
                else:
                    a.v_add_f32(Sp[0], Sp[0], z); a.v_fmac_f32(Sp[1], z, z); a.v_add_f32(Sp[2], Sp[2], zg); a.v_fmac_f32(Sp[3], zg, zg)
                    a.v_fmac_f32(Sp[4], zg, g2[j]); a.v_fmac_f32(Sp[5], zg, sbv[j])
            a.v_mov_b32(Sp[6], 0); a.v_mov_b32(Sp[7], 0)
            for j in range(4): a.v_cvt_pk_bf16_f32(og[4 * p + j], ZG[8 * p + 2 * j], ZG[8 * p + 2 * j + 1])
        a.buffer_store_dwordx4(og.sub(0, 4), vres, rXG, 0, mods=f'offen {ST}'); a.buffer_store_dwordx4(og.sub(4, 4), vres, rXG, s64k, mods=f'offen {ST}')
        CC = v(8, 4)
        for j in range(8):
            if j == 0:
                a.v_mov_b32(CC[0], g2[j]); a.v_mul_f32(CC[1], g2[j], g2[j]); a.v_mul_f32(CC[2], g2[j], sbv[j]); a.v_mov_b32(CC[3], sbv[j]); a.v_mul_f32(CC[4], sbv[j], sbv[j])
            else:
                a.v_add_f32(CC[0], CC[0], g2[j]); a.v_fmac_f32(CC[1], g2[j], g2[j]); a.v_fmac_f32(CC[2], g2[j], sbv[j]); a.v_add_f32(CC[3], CC[3], sbv[j]); a.v_fmac_f32(CC[4], sbv[j], sbv[j])
        for j in range(5, 8): a.v_mov_b32(CC[j], 0)
        dpp_allreduce16(a, [S[8 * p + i] for p in range(2) for i in range(6)] + [CC[i] for i in range(5)])
        sst = s(); a.s_lshl_b32(sst, smt, 6 + 8); a.s_lshl_b32('s3', snt, 5); a.s_add_u32(sst, sst, 's3')
        rS = k.srd(pws, WS_STAT, 2048 * 256 + 256)
        vs = v(); L.shl(vs, row_, 8)
        sv = s(2)
        a.v_cmp_eq_u32('vcc', 0, vch); a.s_and_saveexec_b64(sv, 'vcc')
        s8k = s(); a.s_add_u32(s8k, sst, 32 * 256)
        a.buffer_store_dwordx4(S.sub(0, 4), vs, rS, sst, mods='offen'); a.buffer_store_dwordx4(S.sub(4, 4), vs, rS, sst, mods='offen offset:16')
        a.buffer_store_dwordx4(S.sub(8, 4), vs, rS, s8k, mods='offen'); a.buffer_store_dwordx4(S.sub(12, 4), vs, rS, s8k, mods='offen offset:16')
        a.s_mov_b64('exec', sv)
        labc = k.lbl('noconst')
        a.s_cmp_eq_u32(smt, 0); a.s_cbranch_scc0(labc)
        a.v_cmp_eq_u32('vcc', 0, 'v0'); a.s_and_saveexec_b64(sv, 'vcc'); a.s_cbranch_execz(labc)
        scc_ = s(); a.s_lshl_b32(scc_, snt, 5); a.s_add_u32(scc_, scc_, 2048 * 256)
        vz = v(); a.v_mov_b32(vz, 0)
        a.buffer_store_dwordx4(CC.sub(0, 4), vz, rS, scc_, mods='offen'); a.buffer_store_dwordx4(CC.sub(4, 4), vz, rS, scc_, mods='offen offset:16')
        a.label(labc)
        a.s_mov_b64('exec', sv)
    k.stamp(2)
    return k

C1 = -2.0 * 1.4426950408889634 * 0.7978845608028654
C2 = C1 * 0.044715

def gen_g1():
    BM, BN, NS = 128, 224, 3
    SLOT = BM * 128 + 64 * BN * 2
    LDS_RS = NS * SLOT
    LDS_CV = LDS_RS + 2048
    LDS_E = LDS_CV + 3584; ERS = 2080
    k = Kern('k5_g1_kernel', 512, LDS_E + 4 * ERS, 256)
    a, L, v, s = k.a, k.L, k.v, k.s
    k.exit_if_wg_ge(256)
    k.stamp_init(4)
    pws = k.ptr('ws'); pb1 = k.ptr('b1'); pw1 = k.ptr('w1')
    smt, snt = xcd_tile(k, 2, 8, 4)
    lane_, wave_, w4_, swv, sw4 = roles(k)
    G = Gemm(k, BM, BN, 2, 2, 16, NS, 2048, 7168)
    sro, sco = s(), s()
    a.s_lshl_b32(sro, smt, 7 + 11)
    a.s_mul_i32(sco, snt, 448)
    mk = v.mark()
    labL, labE = k.lbl('loader'), k.lbl('epi')
    a.s_cmp_ge_u32(swv, 4); a.s_cbranch_scc1(labL)
    a('s_setprio 1')
    G.consumer_setup(lane_, w4_)
    vE, vt, vt2 = v(), v(), v()
    m_ = L.and_(vt, lane_, 15); a.v_min_u32(vt, 3, vt); m3 = L.mk(vt, np.minimum(m_.val, 3)); e = L.mul(vE, ERS, m3)
    g16 = L.shr(vt2, lane_, 4); e = L.lshl_add(vE, g16, 4, e); L.add(vE, LDS_E, e)
    G.enable_extra(vE)
    labW1, labJ = k.lbl('wm1'), k.lbl('join')
    a.s_cmp_ge_u32(sw4, 2); a.s_cbranch_scc1(labW1)
    G.ext = [0, 1, 2, 3]; G.consumer_run()
    vu = v()
    def write_u(tiles):
        sv = s(2)
        m_ = L.and_(vt, lane_, 15); t = L.mul(vu, 896, m_); g16 = L.shr(vt2, lane_, 4); t = L.lshl_add(vu, g16, 4, t)
        wn = L.and_(vt2, w4_, 1); wn = L.mul(vt2, 448, wn); t = L.add(vu, t, wn); L.add(vu, LDS_CV, t)
        a.v_cmp_gt_u32('vcc', 3, vt); a.s_and_saveexec_b64(sv, 'vcc')
        for i, t_ in enumerate(tiles): a.ds_write_b128(vu, G.accE.sub(4 * i, 4), mods=f'offset:{64 * t_}')
        a.s_mov_b64('exec', sv)
    write_u(G.ext)
    a.s_branch(labJ)
    a.label(labW1)
    G.ext = [4, 5, 6]; G.consumer_run()
    write_u(G.ext)
    a.label(labJ)
    k.stamp(1)
    a('s_waitcnt lgkmcnt(0)\ns_barrier')
    RS = 464
    vr, vc, vh = v(), v(), v()
    m_ = L.and_(vt, lane_, 15); wm = L.shr(vt2, w4_, 1); row = L.lshl_add(vt, wm, 6, m_)
    r = L.shl(vr, row, 4); L.add(vr, LDS_RS, r)
    hb = L.mul(vh, RS, row)
    g16 = L.shr(vt, lane_, 4); wn = L.and_(vt2, w4_, 1); cn = L.mul(vt2, 112, wn); cn = L.lshl_add(vt2, g16, 2, cn)
    c4 = L.shl(vc, cn, 2); L.add(vc, LDS_CV, c4)
    L.lshl_add(vh, cn, 1, hb)
    rs = G.fX[0].sub(0, 16)
    for m in range(4): a.ds_read_b128(rs.sub(4 * m, 4), vr, mods=f'offset:{16 * 16 * m}')
    cv = [G.fW[0].sub(0, 16), G.fW[1].sub(0, 16)]
    def rd_cv(t, dst):
        for q in range(4): a.ds_read_b128(dst.sub(4 * q, 4), vc, mods=f'offset:{896 * q + 64 * t}')
    sC = s(4); a.s_mov_b32(sC[0], fhex(C1)); a.s_mov_b32(sC[1], fhex(C1))
    T = G.fX[1].sub(0, 16)
    vC2 = G.fW[0].sub(16, 2); a.v_mov_b32(vC2[0], fhex(C2)); a.v_mov_b32(vC2[1], fhex(C2))
    rd_cv(0, cv[0])
    for t in range(7):
        if t + 1 < 7:
            rd_cv(t + 1, cv[(t + 1) & 1]); a('s_waitcnt lgkmcnt(4)')
        else:
            a('s_waitcnt lgkmcnt(0)')
        c = cv[t & 1]
        for mp in range(2):
            ms = (2 * mp, 2 * mp + 1)
            P = {m: [T.sub(8 * (m & 1), 2), T.sub(8 * (m & 1) + 2, 2)] for m in ms}; Z = {m: [T.sub(8 * (m & 1) + 4, 2), T.sub(8 * (m & 1) + 6, 2)] for m in ms}
            it = [(m, h) for m in ms for h in range(2)]
            U = lambda q, h: c.sub(4 * q + 2 * h, 2)
            ab = lambda m: rs.sub(4 * m, 2); cd = lambda m: rs.sub(4 * m + 2, 2)
            for m, h in it: a.v_pk_fma_f32(P[m][h], cd(m), U(2, h), U(3, h), mods='op_sel:[1,0,0] op_sel_hi:[1,1,1]')
            for m, h in it: a.v_pk_fma_f32(P[m][h], cd(m), U(1, h), P[m][h], mods='op_sel:[0,0,0] op_sel_hi:[0,1,1]')
            for m, h in it: a.v_pk_fma_f32(P[m][h], ab(m), U(0, h), P[m][h], mods='op_sel:[1,0,0] op_sel_hi:[1,1,1]')
            for m, h in it: a.v_pk_fma_f32(P[m][h], ab(m), G.acc.sub(4 * (m * G.nt + t) + 2 * h, 2), P[m][h], mods='op_sel:[0,0,0] op_sel_hi:[0,1,1]')
            for m, h in it: a.v_pk_mul_f32(Z[m][h], P[m][h], P[m][h])
            for m, h in it: a.v_pk_fma_f32(Z[m][h], Z[m][h], vC2, sC.sub(0, 2))
            for m, h in it: a.v_pk_mul_f32(Z[m][h], Z[m][h], P[m][h])
            for m, h in it:
                a.v_exp_f32(Z[m][h][0], Z[m][h][0]); a.v_exp_f32(Z[m][h][1], Z[m][h][1])
            for m, h in it: a.v_pk_add_f32(Z[m][h], Z[m][h], 1.0, mods='op_sel_hi:[1,0]')
            for m, h in it:
                a.v_rcp_f32(Z[m][h][0], Z[m][h][0]); a.v_rcp_f32(Z[m][h][1], Z[m][h][1])
            for m, h in it: a.v_pk_mul_f32(P[m][h], P[m][h], Z[m][h])
            for m in ms:
                o = Z[m][0]
                a.v_cvt_pk_bf16_f32(o[0], P[m][0][0], P[m][0][1]); a.v_cvt_pk_bf16_f32(o[1], P[m][1][0], P[m][1][1])
            for m in ms: a.ds_write_b64(vh, Z[m][0], mods=f'offset:{16 * m * RS + 32 * t}')
    a('s_waitcnt lgkmcnt(0)')
    a.s_branch(labE)
    v.release(mk)
    a.label(labL)
    vt, vt2, vt3 = v(), v(), v()
    lt = L.and_(vt, k.tid, 255)
    vlt = v(); lt = L.mov(vlt, lt)
    v16 = v(); L.shl(v16, lt, 4)
    G.loader_setup(lane_, w4_, None, None)
    a('s_waitcnt lgkmcnt(0)')
    rX = k.srd(pws, WS_XG, 128 * 2048, dyn_off=sro)
    rW = k.srd(pw1, 0, 1024 * 7168, dyn_off=sco); a.s_sub_u32(rW[2], 1024 * 7168, sco)
    G.rX, G.rW = rX, rW
    rM = k.srd(pws, WS_MOD, 6144 * 4)
    GV = v(4, 4); SV = v(4, 4)
    sg, ss = s(), s(); a.s_mov_b32(sg, 4 * 4096); a.s_mov_b32(ss, 3 * 4096)
    rS = k.srd(pws, WS_STAT, 2049 * 256)
    sso = s(); a.s_lshl_b32(sso, smt, 7 + 8)
    vs = v(); L.shl(vs, lt, 7)
    P8 = v(32, 4)
    vz = v(); L.shl(vz, lane_, 2)
    sc0 = s(); a.s_mov_b32(sc0, 2048 * 256)
    CPv = v(2)
    rB1 = k.srd(pb1, 0, 7168)
    vb = v(); L.shl(vb, lt, 3); B1 = v(2, 2)
    k.stamp(4)
    def pre0():
        a.buffer_load_dwordx4(GV, v16, rM, sg, mods='offen'); a.buffer_load_dwordx4(SV, v16, rM, ss, mods='offen')
    def pre():
        k.stamp(5)
        a(f's_waitcnt vmcnt({NS * G.NI})')
        E2 = v(8, 2)
        a.v_cvt_pk_bf16_f32(E2[0], GV[0], GV[1]); a.v_cvt_pk_bf16_f32(E2[1], GV[2], GV[3])
        a.v_cvt_pk_bf16_f32(E2[2], SV[0], SV[1]); a.v_cvt_pk_bf16_f32(E2[3], SV[2], SV[3])
        a.v_mov_b32(E2[4], '0x3f803f80'); a.v_mov_b32(E2[5], '0x3f803f80'); a.v_mov_b32(E2[6], 0); a.v_mov_b32(E2[7], 0)
        ve = v(); t = L.shl(ve, lt, 3); L.add(ve, LDS_E, t)
        for r_ in range(4): a.ds_write_b64(ve, E2.sub(2 * r_, 2), mods=f'offset:{ERS * r_}')
        a('s_waitcnt lgkmcnt(0)')
        k.stamp(6)
    def mid():
        for i in range(8): a.buffer_load_dwordx4(P8.sub(4 * i, 4), vs, rS, sso, mods=f'offen offset:{16 * i}')
        a.buffer_load_dword(CPv[0], vz, rS, sc0, mods='offen')
        a.buffer_load_dwordx2(B1, vb, rB1, sco, mods='offen')
    G.pre0 = pre0; G.mid = mid
    def post():
        sv = s(2)
        bf = v(4, 4)
        unpack_bf16(a, bf[0], bf[1], B1[0]); unpack_bf16(a, bf[2], bf[3], B1[1])
        vw = v(); L.add(vw, LDS_CV + 3 * 896, L.shl(vw, lt, 4))
        a.v_cmp_gt_u32('vcc', 56, vlt); a.s_and_saveexec_b64(sv, 'vcc')
        labb = k.lbl('nob1'); a.s_cbranch_execz(labb)
        a.ds_write_b128(vw, bf)
        a.label(labb)
        a.s_mov_b64('exec', sv)
        inv = fhex(1 / 1024)
        a.v_add_f32_dpp(CPv[0], CPv[0], CPv[0], mods='row_ror:8 row_mask:0xf bank_mask:0xf')
        a.v_mov_b32(CPv[1], CPv[0]); a.v_permlane16_swap_b32(CPv[0], CPv[1]); a.v_add_f32(CPv[0], CPv[0], CPv[1])
        a.v_mov_b32(CPv[1], CPv[0]); a.v_permlane32_swap_b32(CPv[0], CPv[1]); a.v_add_f32(CPv[0], CPv[0], CPv[1])
        a.v_mul_f32(CPv[0], inv, CPv[0])
        CP = s(5)
        for j in range(5): a.v_readlane_b32(CP[j], CPv[0], j)
        mg, mg2, mgs, ms, ms2 = (CP[j] for j in range(5))
        for n in (2, 1):
            for i in range(n):
                for j in range(6): a.v_add_f32(P8[8 * i + j], P8[8 * i + j], P8[8 * (i + n) + j])
        for j in range(6): a.v_add_f32_dpp(P8[j], P8[j], P8[j], mods='quad_perm:[1,0,3,2] row_mask:0xf bank_mask:0xf')
        for j in range(6): a.v_mul_f32(P8[j], inv, P8[j])
        mz, mz2, mzg, mz2g2, mzg2, mzgs = (P8[j] for j in range(6))
        x0, x1, x2, x3, r1, r2, mu2 = (P8[8 + j] for j in range(7))
        eps = fhex(1e-5)
        a(f'v_fma_f32 {x0}, -{mz}, {mz}, {mz2}')
        a.v_max_f32(x0, 0, x0)
        a.v_add_f32(x0, eps, x0); a.v_rsq_f32(r1, x0)
        a(f'v_fma_f32 {x1}, -{mz}, {mg}, {mzg}'); a.v_fma_f32(mu2, r1, x1, ms)
        a.v_mul_f32(x1, mg2, mz); a(f'v_fma_f32 {x1}, -2.0, {mzg2}, {x1}'); a.v_fma_f32(x1, x1, mz, mz2g2)
        a.v_mul_f32(x1, x1, r1)
        a(f'v_fma_f32 {x2}, -{mz}, {mgs}, {mzgs}'); a(f'v_fma_f32 {x1}, 2.0, {x2}, {x1}')
        a.v_fma_f32(x1, x1, r1, ms2)
        a(f'v_fma_f32 {x1}, -{mu2}, {mu2}, {x1}'); a.v_max_f32(x1, 0, x1); a.v_add_f32(x1, eps, x1); a.v_rsq_f32(r2, x1)
        o = P8.sub(16, 4)
        a.v_mul_f32(o[0], r1, r2)
        a(f'v_mul_f32 {o[1]}, {mz}, {o[0]}'); a.v_sub_f32(o[1], 0, o[1])
        a.v_mov_b32(o[2], r2)
        a.v_mul_f32(o[3], mu2, r2); a.v_sub_f32(o[3], 0, o[3])
        vw2 = v(); t = L.shr(vw2, lt, 1); t = L.shl(vw2, t, 4); L.add(vw2, LDS_RS, t)
        L.and_(vt, lt, 1)
        a.v_cmp_eq_u32('vcc', 0, vt); a.s_and_saveexec_b64(sv, 'vcc')
        a.ds_write_b128(vw2, o)
        a.s_mov_b64('exec', sv)
    G.loader_run(sw4, pre_issue=pre, post=post)
    k.stamp(1)
    a('s_waitcnt lgkmcnt(0)\ns_barrier')
    a.label(labE)
    v.release(mk)
    a('s_barrier')
    k.stamp(2)
    sh = s(); a.s_mul_i32(sh, smt, 128 * 7168); a.s_add_u32(sh, sh, sco)
    rH = k.srd(pws, WS_HH, 128 * 7168, dyn_off=sh); a.s_sub_u32(rH[2], 128 * 7168, sco)
    RS = 464
    vi, vr_, vc_, vl, vg = v(), v(), v(), v(7), v(7)
    D = v(28, 4)
    for i in range(7):
        idx = L.add(vi, 512 * i, k.tid) if i else L.mov(vi, k.tid)
        r = L.mul(vr_, 9363, idx); r = L.shr(vr_, r, 18); assert (r.val == idx.val // 28).all()
        m28 = L.mul(vc_, 28, r); a.v_sub_u32(vc_, vi, vc_); c = L.mk(vc_, idx.val - m28.val)
        t = L.mul(vl[i], RS, r); L.lshl_add(vl[i], c, 4, t)
        t = L.mul(vg[i], 7168, r); L.lshl_add(vg[i], c, 4, t)
        a.ds_read_b128(D.sub(4 * i, 4), vl[i])
    for i in range(7):
        a(f's_waitcnt lgkmcnt({6 - i})')
        a.buffer_store_dwordx4(D.sub(4 * i, 4), vg[i], rH, 0, mods=f'offen {ST}')
    k.stamp(3)
    return k
```

```python
import sys
from common import *
from k12 import *
from k456 import *
from k3 import *
from k12f import *
from k2opt import *
from kq import *
ks = []
gens = [gen_k1_full, gen_k2opt, gen_k3, lambda: gen_proj('wo'), gen_g1, lambda: gen_proj('g2')]
for g in gens:
    k = g(); txt, desc = k.finish(); ks.append((k, txt, desc))
assemble_file(ks, 'adaLN_cond__grouped_kv_mqa__mixer_channel_mlp__prompt.s.ref', 'dev.s')
```

```python
from common import *
import os

LOG2E = 1.4426950408889634
def fhex(x):
    return hex(int(np.float32(x).view(np.uint32)))

def round_bf16(a, r, tmp=None):
    a.v_cvt_pk_bf16_f32(r, r, r)
    a.v_and_b32(r, '0xffff0000', r)

STH = os.environ.get('STH', '')
ST = os.environ.get('ST', 'sc1')

def silu_bf16(a, c, e):
    n = len(c)
    for i in range(n): a.v_lshlrev_b32(c[i], 16, c[i])
    for i in range(n): a.v_mul_f32(e[i], fhex(-LOG2E), c[i])
    for i in range(n): a.v_exp_f32(e[i], e[i])
    for i in range(n): a.v_add_f32(e[i], 1.0, e[i])
    for i in range(n): a.v_rcp_f32(e[i], e[i])
    for i in range(n): a.v_mul_f32(c[i], c[i], e[i])
    for i in range(n): round_bf16(a, c[i])

def gen_k1_full():
    k = Kern('k1_mod_kernel', 1024, 8192, 256)
    a, L, v, s = k.a, k.L, k.v, k.s
    k.exit_if_wg_ge(256)
    k.stamp_init(0)
    pc = k.ptr('c'); pw = k.ptr('wmod'); pws = k.ptr('ws')
    px = k.ptr('x'); pq = k.ptr('wq'); pk = k.ptr('wk'); pv = k.ptr('wv')
    sx, si, sch, skq = s(), s(), s(), s()
    a.s_lshr_b32(skq, 's2', 6)
    a.s_and_b32(sx, 's2', 7); a.s_lshr_b32(si, 's2', 3); a.s_and_b32(si, si, 7)
    a.s_lshr_b32(sch, si, 1); a.s_lshl_b32(sch, sch, 4); a.s_lshl_b32(sx, sx, 1); a.s_add_u32(sch, sch, sx)
    a.s_and_b32(si, si, 1); a.s_add_u32(sch, sch, si)
    voff, vc, vt = v(), v(), v()
    rg = L.shr(vt, k.tid, 2)
    t1 = L.mul(voff, 12288, rg)
    t2 = L.and_(vc, k.tid, 3)
    L.lshl_add(voff, t2, 4, t1)
    L.shl(vc, rg, 1)
    so, sco = s(), s()
    a.s_mul_i32(so, skq, 256 * 12288); a.s_lshl_b32('s3', sch, 6); a.s_add_u32(so, so, 's3')
    a.s_lshl_b32(sco, skq, 9)
    sw = s(); a.v_readfirstlane_b32(sw, 'v0')
    swv = s(); a.s_lshr_b32(swv, sw, 6)
    a('s_waitcnt lgkmcnt(0)')
    rW = k.srd(pw, 0, 1024 * 6144 * 2); rC = k.srd(pc, 0, 2048)
    w = v(4, 4); c = v(1)
    a.buffer_load_dwordx4(w, voff, rW, so, mods='offen')
    a.buffer_load_ushort(c[0], vc, rC, sco, mods='offen')
    sv = s(2)
    XR = v(8, 4); vxr = v(); vd = v(); vg = v(); A = v(2, 2); B = v(2, 2)
    sxo = s(); a.s_lshl_b32(sxo, 's2', 3); a.s_add_u32(sxo, sxo, swv); a.s_lshl_b32(sxo, sxo, 11)
    labx, labp = k.lbl('nox'), k.lbl('nopf')
    a.s_cmp_lt_u32(swv, 8); a.s_cbranch_scc0(labx)
    rX = k.srd(px, 0, 2048 * 2048)
    a.v_and_b32(vxr, 63, 'v0'); a.v_lshlrev_b32(vxr, 4, vxr)
    a.buffer_load_dwordx4(XR.sub(0, 4), vxr, rX, sxo, mods='offen'); a.buffer_load_dwordx4(XR.sub(4, 4), vxr, rX, sxo, mods='offen offset:1024')
    a('s_waitcnt vmcnt(2)')
    a.s_branch(labp)
    a.label(labx)
    a.s_mul_i32('s3', 's2', 68); a.v_subrev_u32(vg, 512, 'v0')
    a.v_cmp_gt_u32('vcc', 68, vg); a.v_add_u32(vg, 's3', vg)
    a.s_and_saveexec_b64(sv, 'vcc')
    labr = k.lbl('pfr'); a.s_cbranch_execz(labr)
    a.v_mov_b32(A[0], pq[0]); a.v_mov_b32(A[1], pq[1]); a.v_mov_b32(vd, 0)
    for (pp, start) in ((pk, 16384), (pv, 16896)):
        a.v_cmp_le_u32('vcc', start, vg)
        a.v_mov_b32(B[0], pp[0]); a.v_mov_b32(B[1], pp[1])
        a.v_cndmask_b32(A[0], A[0], B[0], 'vcc'); a.v_cndmask_b32(A[1], A[1], B[1], 'vcc')
        a.v_mov_b32(B[0], start); a.v_cndmask_b32(vd, vd, B[0], 'vcc')
    a.v_sub_u32(vg, vg, vd); a.v_lshlrev_b32(vg, 7, vg)
    a.v_add_co_u32(A[0], 'vcc', A[0], vg); a.v_addc_co_u32(A[1], 'vcc', 0, A[1], 'vcc')
    a.global_load_dword(vd, A, 'off')
    a.label(labr)
    a.s_mov_b64('exec', sv)
    labc = k.lbl('nocode')
    a.s_cmp_lt_u32('s2', 8); a.s_cbranch_scc0(labc)
    spc = s(2); vcd, vco = v(), v(); CA = v(2, 2)
    a.s_getpc_b64(spc)
    a.label('L_k1_pc')
    a.s_add_u32(spc[0], spc[0], '(CODE_BEGIN-L_k1_pc)'); a.s_addc_u32(spc[1], spc[1], 0)
    a.v_subrev_u32(vco, 640, 'v0'); a.v_lshlrev_b32(vco, 7, vco)
    a.v_cmp_gt_u32('vcc', '(CODE_END-CODE_BEGIN)', vco)
    a.s_and_saveexec_b64(sv, 'vcc')
    a.s_cbranch_execz(labc + '_r')
    a.v_mov_b32(CA[1], spc[1]); a.v_add_co_u32(CA[0], 'vcc', spc[0], vco); a.v_addc_co_u32(CA[1], 'vcc', 0, CA[1], 'vcc')
    a.global_load_dword(vcd, CA, 'off')
    a.label(labc + '_r')
    a.s_mov_b64('exec', sv)
    a.label(labc)
    a('s_waitcnt vmcnt(0)')
    a.label(labp)
    acc = v(8, 4); e = v(1); lo, hi = v(), v()
    silu_bf16(a, [c[0]], e)
    for j in range(4):
        unpack_bf16(a, lo, hi, w[j])
        a.v_mul_f32(acc[2 * j], c[0], lo); a.v_mul_f32(acc[2 * j + 1], c[0], hi)
    for m in ('row_ror:4', 'row_ror:8'):
        for j in range(8): a.v_add_f32_dpp(acc[j], acc[j], acc[j], mods=f'{m} row_mask:0xf bank_mask:0xf')
    va = v()
    t = L.shr(va, k.tid, 4); t = L.shl(va, t, 7)
    t3 = L.and_(vt, k.tid, 3); L.lshl_add(va, t3, 5, t)
    L.and_(vt, k.tid, 15)
    a.v_cmp_gt_u32('vcc', 4, vt)
    a.s_and_saveexec_b64(sv, 'vcc')
    a.ds_write_b128(va, acc.sub(0, 4)); a.ds_write_b128(va, acc.sub(4, 4), mods='offset:16')
    a.s_mov_b64('exec', sv)
    k.stamp(1)
    a('s_waitcnt lgkmcnt(0)\ns_barrier')
    labF, labS = k.lbl('fin'), k.lbl('stat')
    a.s_cmp_ge_u32(swv, 8); a.s_cbranch_scc1(f'L_{k.name}_end')
    a.s_cmp_eq_u32(swv, 0); a.s_cbranch_scc0(labS)
    t = L.and_(va, k.tid, 31); t = L.shl(va, t, 2)
    th = L.bfe(vt, k.tid, 5, 1); L.lshl_add(va, th, 12, t)
    p = v(32)
    for i in range(32): a.ds_read_b32(p[i], va, mods=f'offset:{128 * i}')
    a('s_waitcnt lgkmcnt(0)')
    n = 32
    while n > 1:
        for i in range(n // 2): a.v_add_f32(p[i], p[i], p[i + n // 2])
        n //= 2
    a.v_mov_b32(p[1], p[0])
    a.v_permlane32_swap_b32(p[0], p[1])
    a.v_add_f32(p[0], p[0], p[1])
    rM = k.srd(pws, WS_MP1, 4 * 2048 * 4)
    sb = s(); a.s_lshl_b32(sb, skq, 13); a.s_lshl_b32('s3', sch, 7); a.s_add_u32(sb, sb, 's3')
    t = L.and_(va, k.tid, 31); L.shl(va, t, 2)
    a.v_cmp_gt_u32('vcc', 32, 'v0')
    a.s_and_saveexec_b64(sv, 'vcc')
    a.buffer_store_dword(p[0], va, rM, sb, mods='offen')
    a.s_mov_b64('exec', sv)
    a.label(labS)
    f = v(16, 2); sm_ = v(2); smu = s()
    a('s_waitcnt vmcnt(1)')
    labw = k.lbl('w0'); a.s_cmp_eq_u32(swv, 0); a.s_cbranch_scc1(labw)
    a('s_waitcnt vmcnt(0)')
    a.label(labw)
    for j in range(8): unpack_bf16(a, f[2 * j], f[2 * j + 1], XR[j])
    a.v_add_f32(sm_[0], f[0], f[1])
    for j in range(2, 16): a.v_add_f32(sm_[0], sm_[0], f[j])
    a.v_mul_f32(sm_[0], fhex(1 / 1024), sm_[0])
    wave_sum_dpp(a, [sm_[0]])
    a.v_readlane_b32(smu, sm_[0], 63)
    for j in range(16): a.v_subrev_f32(f[j], smu, f[j])
    a.v_mul_f32(sm_[0], f[0], f[0])
    for j in range(1, 16): a.v_fmac_f32(sm_[0], f[j], f[j])
    a.v_mul_f32(sm_[0], fhex(1 / 1024), sm_[0])
    wave_sum_dpp(a, [sm_[0]])
    a.v_add_f32(sm_[0], fhex(1e-5), sm_[0]); a.v_rsq_f32(sm_[0], sm_[0])
    a.v_mul_f32(sm_[1], smu, sm_[0]); a.v_sub_f32(sm_[1], 0, sm_[1])
    rRS = k.srd(pws, WS_RS, 2048 * 8)
    srs = s(); a.s_lshr_b32(srs, sxo, 8)
    vz = v(); a.v_mov_b32(vz, 0)
    a.s_mov_b32('exec_lo', 0); a.s_mov_b32('exec_hi', '0x80000000')
    a.buffer_store_dwordx2(sm_.sub(0, 2), vz, rRS, srs, mods='offen')
    a.s_mov_b64('exec', -1)
    k.stamp(3)
    return k

def gen_k2():
    LDS_R, LDS_S, LDS_H, LDS_W = 0, 16384, 20480, 53248
    LDS_M = 0
    k = Kern("k2_ln_kv_kernel", 512, LDS_W + 65536, 256)
    a, L, v, s = k.a, k.L, k.v, k.s
    k.exit_if_wg_ge(256)
    k.stamp_init(1)
    px = k.ptr('x'); pk = k.ptr('wk'); pv = k.ptr('wv'); pws = k.ptr('ws')
    sR, ssel, st = s(), s(), s()
    a.s_and_b32(sR, 's2', 3); a.s_lshl_b32(sR, sR, 5); a.s_lshr_b32('s3', 's2', 3); a.s_add_u32(sR, sR, 's3')
    a.s_bfe_u32(ssel, 's2', (1 << 16) | 2)
    pq = k.ptr('wq')
    lane, wv, vt, vt2 = v(), v(), v(), v()
    lane_ = L.and_(lane, k.tid, 63); wave_ = L.shr(wv, k.tid, 6)
    swv = s(); swave = L.rfl(swv, wave_)
    vw = v()
    t = L.shr(vt, lane_, 2); t = L.shl(vw, t, 6)
    u = L.shr(vt, lane_, 5); u = L.shl(vt, u, 1); p_ = L.and_(vt2, lane_, 3); u = L.xor(vt, u, p_)
    L.lshl_add(vw, u, 4, t)
    vx = v()
    t = L.shl(vt, wave_, 12); L.lshl_add(vx, lane_, 4, t)
    vm = v(); L.shl(vm, lane_, 5)
    a('s_waitcnt lgkmcnt(0)')
    a.s_cmp_eq_u32(ssel, 0)
    pw = s(2); a.s_cselect_b32(pw[0], pk[0], pv[0]); a.s_cselect_b32(pw[1], pk[1], pv[1])
    rW = k.srd(pw, 0, 65536)
    a.s_lshl_b32(st, sR, 15)
    rX = k.srd(px, 0, 32768, dyn_off=st)
    rH = k.srd(pws, WS_H1, 32768, dyn_off=st)
    rM = k.srd(pws, WS_MP1, 4 * 2048 * 4)
    x = v(16, 4)
    for i in range(2):
        for h in range(2):
            a.buffer_load_dwordx4(x.sub(8 * i + 4 * h, 4), vx, rX, 0, mods=f'offen offset:{2048 * i + 1024 * h}')
    sa = v(16, 4); g = v(16, 4)
    MP = v(16, 4); vmp = v(); L.shl(vmp, k.tid, 4)
    smp = s(4)
    for q in range(4):
        a.s_mov_b32(smp[q], 8192 * q)
        a.buffer_load_dwordx4(MP.sub(4 * q, 4), vmp, rM, smp[q], mods='offen')
    f = v(32, 2)
    k.stamp(4)
    a('s_waitcnt vmcnt(4)')
    k.stamp(5)
    for i in range(2):
        for j in range(8): unpack_bf16(a, f[16 * i + 2 * j], f[16 * i + 2 * j + 1], x[8 * i + j])
    sm_ = v(2); smu = s(2); srs = s(2)
    for i in range(2):
        a.v_add_f32(sm_[i], f[16 * i], f[16 * i + 1])
        for j in range(2, 16): a.v_add_f32(sm_[i], sm_[i], f[16 * i + j])
        a.v_mul_f32(sm_[i], fhex(1 / 1024), sm_[i])
    wave_sum_dpp(a, [sm_[0], sm_[1]])
    for i in range(2): a.v_readlane_b32(smu[i], sm_[i], 63)
    for i in range(2):
        for j in range(16): a.v_subrev_f32(f[16 * i + j], smu[i], f[16 * i + j])
    for i in range(2):
        a.v_mul_f32(sm_[i], f[16 * i], f[16 * i])
        for j in range(1, 16): a.v_fmac_f32(sm_[i], f[16 * i + j], f[16 * i + j])
        a.v_mul_f32(sm_[i], fhex(1 / 1024), sm_[i])
    wave_sum_dpp(a, [sm_[0], sm_[1]])
    for i in range(2): a.v_add_f32(sm_[i], fhex(1e-5), sm_[i])
    for i in range(2): a.v_rsq_f32(sm_[i], sm_[i])
    for i in range(2): a.v_readlane_b32(srs[i], sm_[i], 63)
    sm, so = s(), s()
    a.s_lshl_b32(so, swv, 13)
    for j in range(8):
        a.s_add_u32('m0', so, LDS_W + 1024 * j)
        if j: a.s_add_u32(sm, so, 1024 * j)
        a.buffer_load_dwordx4(vw, rW, sm if j else so, mods='offen lds')
    vq, vqd = v(), v()
    t = L.shr(vq, k.tid, 3); t = L.shl(vq, t, 11); u = L.and_(vqd, k.tid, 7); L.lshl_add(vq, u, 7, t)
    sq = s(); a.s_lshr_b32(sq, 's2', 3); a.s_lshl_b32(sq, sq, 16); a.s_lshl_b32('s3', ssel, 10); a.s_add_u32(sq, sq, 's3')
    rQ = k.srd(pq, 0, 1024 * 2048)
    labq = k.lbl('noq')
    a.s_cmp_ge_u32(swv, 4); a.s_cbranch_scc1(labq)
    a.buffer_load_dword(vqd, vq, rQ, sq, mods='offen')
    a.label(labq)
    NQ = 1
    k.stamp(6)
    a('s_waitcnt vmcnt(8)')
    k.stamp(7)
    for j in range(4):
        a.v_add_f32(MP[j], MP[j], MP[4 + j]); a.v_add_f32(MP[8 + j], MP[8 + j], MP[12 + j]); a.v_add_f32(MP[j], MP[j], MP[8 + j])
        round_bf16(a, MP[j])
    labg = k.lbl('noadd')
    a.s_cmp_ge_u32(swv, 4); a.s_cbranch_scc0(labg)
    for j in range(4):
        a.v_add_f32(MP[j], 1.0, MP[j]); round_bf16(a, MP[j])
    a.label(labg)
    a.ds_write_b128(vmp, MP.sub(0, 4), mods=f'offset:{LDS_M}')
    a('s_waitcnt lgkmcnt(0)\ns_barrier')
    for q, (dst, off) in enumerate(((sa.sub(0, 8), 0), (sa.sub(8, 8), 2048), (g.sub(0, 8), 4096), (g.sub(8, 8), 6144))):
        a.ds_read_b128(dst.sub(0, 4), vm, mods=f'offset:{LDS_M + off}'); a.ds_read_b128(dst.sub(4, 4), vm, mods=f'offset:{LDS_M + off + 16}')
    a('s_waitcnt lgkmcnt(0)')
    for i in range(2):
        for j in range(16):
            a.v_mul_f32(f[16 * i + j], srs[i], f[16 * i + j])
            a.v_fma_f32(f[16 * i + j], f[16 * i + j], g[j], sa[j])
        for j in range(8): a.v_cvt_pk_bf16_f32(x[8 * i + j], f[16 * i + 2 * j], f[16 * i + 2 * j + 1])
    vh = v(2)
    for i in range(2):
        r = L.lshl_add(vt, wave_, 1, i)
        c = L.xor(vt2, lane_, r)
        t = L.shl(vh[i], r, 11); t = L.lshl_add(vh[i], c, 4, t)
        L.add(vh[i], LDS_H, t)
    for i in range(2):
        a.ds_write_b128(vh[i], x.sub(8 * i, 4)); a.ds_write_b128(vh[i], x.sub(8 * i + 4, 4), mods='offset:1024')
    lab = k.lbl('nostore')
    a.s_lshr_b32('s3', swv, 2); a.s_cmp_eq_u32('s3', ssel); a.s_cbranch_scc0(lab)
    for i in range(2):
        for h in range(2):
            a.buffer_store_dwordx4(x.sub(8 * i + 4 * h, 4), vx, rH, 0, mods=f'offen offset:{2048 * i + 1024 * h} {ST}')
    a.label(lab)
    k.stamp(1)
    a('s_waitcnt vmcnt(0) lgkmcnt(0)\ns_barrier')
    k.stamp(2)
    va = v(2); vb = v()
    g16 = L.shr(vt, lane_, 4)
    kk = L.shl(va[0], g16, 3); r_ = L.bfe(vt2, lane_, 2, 2); kk = L.add(va[0], kk, r_)
    kk = L.lshl_add(va[0], wave_, 7, kk)
    base = L.shl(va[0], kk, 6)
    c1 = L.bfe(vt2, lane_, 1, 1); b3 = L.and_(vt, g16, 1); b3 = L.shl(vt, b3, 1)
    ch0 = L.xor(vt, b3, c1)
    c0 = L.and_(vt2, lane_, 1); c0 = L.shl(vt2, c0, 3)
    t0 = L.lshl_add(va[0], ch0, 4, base); t0 = L.add(va[0], t0, c0)
    t1 = L.xor(va[1], t0, 32)
    for t_, reg in ((0, t0), (1, t1)):
        l = L.tid & 63; w_ = L.tid >> 6
        kref = 128 * w_ + 8 * (l >> 4) + ((l & 15) >> 2)
        ch = (2 * t_ + ((l & 3) >> 1)) ^ (2 * ((kref >> 3) & 1))
        assert (reg.val == kref * 64 + ch * 16 + (l & 1) * 8).all()
    m_ = L.and_(vt, lane_, 15); g16 = L.shr(vt2, lane_, 4)
    ch = L.lshl_add(vb, wave_, 4, g16)
    vbs = v(4)
    for s_ in range(4):
        c_ = L.add(vbs[s_], 4 * s_, ch); c_ = L.xor(vbs[s_], c_, m_)
        c_ = L.shl(vbs[s_], c_, 4); c_ = L.lshl_add(vbs[s_], m_, 11, c_); L.add(vbs[s_], LDS_H, c_)
    A = v(32, 4); B = v(16, 4); acc = v(8, 4)
    for s_ in range(4):
        a.ds_read_b128(B.sub(4 * s_, 4), vbs[s_])
        for t_ in range(2):
            for h in range(2):
                a.ds_read_b64_tr_b16(A.sub(8 * s_ + 4 * t_ + 2 * h, 2), va[t_], mods=f'offset:{LDS_W + (32 * s_ + 4 * h) * 64}')
    a('s_waitcnt lgkmcnt(0)')
    for s_ in range(4):
        for t_ in range(2):
            a.v_mfma_f32_16x16x32_bf16(acc.sub(4 * t_, 4), A.sub(8 * s_ + 4 * t_, 4), B.sub(4 * s_, 4), 0 if s_ == 0 else acc.sub(4 * t_, 4))
    vr = v()
    t = L.shl(vr, wave_, 11); t = L.lshl_add(vr, m_, 7, t); g16 = L.shr(vt2, lane_, 4); t = L.lshl_add(vr, g16, 4, t); L.add(vr, LDS_R, t)
    a.ds_write_b128(vr, acc.sub(0, 4)); a.ds_write_b128(vr, acc.sub(4, 4), mods='offset:64')
    a('s_waitcnt lgkmcnt(0)\ns_barrier')
    L.shl(vr, k.tid, 2)
    pp = v(8)
    for i in range(8): a.ds_read_b32(pp[i], vr, mods=f'offset:{LDS_R + 2048 * i}')
    a('s_waitcnt lgkmcnt(0)')
    for n in (4, 2, 1):
        for i in range(n): a.v_add_f32(pp[i], pp[i], pp[i + n])
    round_bf16(a, pp[0])
    a.ds_write_b32(vr, pp[0], mods=f'offset:{LDS_S}')
    a('s_waitcnt lgkmcnt(0)\ns_barrier')
    k.stamp(3)
    a.s_cmp_ge_u32(swv, 1); a.s_cbranch_scc1(f'L_{k.name}_end')
    sT, sb = s(), s()
    a.s_lshr_b32(sT, sR, 1); a.s_lshl_b32(sT, sT, 11)
    a.s_and_b32(sb, sR, 1)
    labV = k.lbl('v')
    o = v(8, 4); vo = v()
    a.s_cmp_eq_u32(ssel, 0); a.s_cbranch_scc0(labV)
    rK = k.srd(pws, WS_KF, 131072)
    key = L.and_(vt, lane_, 15); c_ = L.bfe(vt2, lane_, 4, 1); t = L.shl(vr, key, 7); t = L.lshl_add(vr, c_, 6, t)
    h_ = L.shr(vo, lane_, 5); L.lshl_add(vr, h_, 4, t)
    a.ds_read_b128(o.sub(0, 4), vr, mods=f'offset:{LDS_S}'); a.ds_read_b128(o.sub(4, 4), vr, mods=f'offset:{LDS_S + 32}')
    t = L.lshl_add(vo, h_, 5, key); t = L.shl(vo, t, 4); L.lshl_add(vo, c_, 10, t)
    a.s_lshl_b32(sb, sb, 8); a.s_add_u32(sT, sT, sb)
    a('s_waitcnt lgkmcnt(0)')
    q = v(2)
    a.v_mul_f32(q[0], o[0], o[0])
    for j in range(1, 8): a.v_fmac_f32(q[0], o[j], o[j])
    for j in range(4): a.v_cvt_pk_bf16_f32(o[j], o[2 * j], o[2 * j + 1])
    a.buffer_store_dwordx4(o.sub(0, 4), vo, rK, sT, mods=f'offen {ST}')
    a.v_mov_b32(q[1], q[0]); a.v_permlane16_swap_b32(q[0], q[1]); a.v_add_f32(q[0], q[0], q[1])
    a.v_mov_b32(q[1], q[0]); a.v_permlane32_swap_b32(q[0], q[1]); a.v_add_f32(q[0], q[0], q[1])
    for m in ('row_ror:1', 'row_ror:2', 'row_ror:4', 'row_ror:8'):
        a.v_max_f32_dpp(q[0], q[0], q[0], mods=f'{m} row_mask:0xf bank_mask:0xf')
    rKM = k.srd(pws, WS_KM, 512)
    a.s_lshl_b32(sb, sR, 2)
    a.v_mov_b32(vr, 0)
    sv = s(2)
    a.v_cmp_eq_u32('vcc', 0, lane); a.s_and_saveexec_b64(sv, 'vcc')
    a.buffer_store_dword(q[0], vr, rKM, sb, mods='offen')
    a.s_branch(f'L_{k.name}_end')
    a.label(labV)
    rV = k.srd(pws, WS_VF, 131072)
    d_ = L.and_(vt, lane_, 31); h_ = L.shr(vt2, lane_, 5); t = L.shl(vr, d_, 2); L.lshl_add(vr, h_, 9, t)
    for t_ in range(8): a.ds_read_b32(o[t_], vr, mods=f'offset:{LDS_S + (8 * (t_ >> 2) + (t_ & 3)) * 128}')
    L.shl(vo, lane_, 4)
    a.s_lshl_b32(sb, sb, 10); a.s_add_u32(sT, sT, sb)
    a('s_waitcnt lgkmcnt(0)')
    for j in range(4): a.v_cvt_pk_bf16_f32(o[j], o[2 * j], o[2 * j + 1])
    a.buffer_store_dwordx4(o.sub(0, 4), vo, rV, sT, mods=f'offen {ST}')
    return k
```

```python
from k12 import *

def gen_k2opt():
    LDS_R, LDS_S, LDS_H, LDS_W = 0, 16384, 20480, 53248
    LDS_M = 0; LDS_G = 8192
    k = Kern("k2_ln_kv_kernel", 512, LDS_W + 65536, 256)
    a, L, v, s = k.a, k.L, k.v, k.s
    k.exit_if_wg_ge(256)
    k.stamp_init(1)
    px = k.ptr('x'); pws = k.ptr('ws'); pk = k.ptr('wk'); pv = k.ptr('wv')
    sR, ssel, st = s(), s(), s()
    a.s_and_b32(sR, 's2', 3); a.s_lshl_b32(sR, sR, 5); a.s_lshr_b32('s3', 's2', 3); a.s_add_u32(sR, sR, 's3')
    a.s_bfe_u32(ssel, 's2', (1 << 16) | 2)
    lane, wv, vt, vt2 = v(), v(), v(), v()
    lane_ = L.and_(lane, k.tid, 63); wave_ = L.shr(wv, k.tid, 6)
    swv = s(); L.rfl(swv, wave_)
    vx = v(); t = L.shl(vt, wave_, 12); L.lshl_add(vx, lane_, 4, t)
    a.s_lshl_b32(st, sR, 15)
    a('s_waitcnt lgkmcnt(0)')
    rX = k.srd(px, 0, 32768, dyn_off=st)
    x = v(16, 4)
    for i in range(2):
        for h in range(2):
            a.buffer_load_dwordx4(x.sub(8 * i + 4 * h, 4), vx, rX, 0, mods=f'offen offset:{2048 * i + 1024 * h}')
    rRS = k.srd(pws, WS_RS, 2048 * 8)
    RS = v(4, 4); vz0 = v(); a.v_mov_b32(vz0, 0)
    srs = s(); a.s_lshl_b32(srs, sR, 7); a.s_lshl_b32('s3', swv, 4); a.s_add_u32(srs, srs, 's3')
    a.buffer_load_dwordx4(RS, vz0, rRS, srs, mods='offen')
    rM = k.srd(pws, WS_MP1, 4 * 2048 * 4)
    vmp = v(); L.shl(vmp, k.tid, 4)
    MP = v(16, 4); smp = s(4)
    for q in range(4):
        a.s_mov_b32(smp[q], 8192 * q)
        a.buffer_load_dwordx4(MP.sub(4 * q, 4), vmp, rM, smp[q], mods='offen')
    sv = s(2)
    rH = k.srd(pws, WS_H1, 32768, dyn_off=st)
    a.s_cmp_eq_u32(ssel, 0)
    pw = s(2); a.s_cselect_b32(pw[0], pk[0], pv[0]); a.s_cselect_b32(pw[1], pk[1], pv[1])
    rW = k.srd(pw, 0, 65536)
    vw = v()
    t = L.shr(vt, lane_, 2); t = L.shl(vw, t, 6)
    u = L.shr(vt, lane_, 5); u = L.shl(vt, u, 1); p_ = L.and_(vt2, lane_, 3); u = L.xor(vt, u, p_)
    L.lshl_add(vw, u, 4, t)
    vm = v(); L.shl(vm, lane_, 5)
    vh = v(2)
    for i in range(2):
        r = L.lshl_add(vt, wave_, 1, i); c = L.xor(vt2, lane_, r)
        t = L.shl(vh[i], r, 11); t = L.lshl_add(vh[i], c, 4, t); L.add(vh[i], LDS_H, t)
    va = v(2); vb = v()
    g16 = L.shr(vt, lane_, 4)
    kk = L.shl(va[0], g16, 3); r_ = L.bfe(vt2, lane_, 2, 2); kk = L.add(va[0], kk, r_)
    kk = L.lshl_add(va[0], wave_, 7, kk); base = L.shl(va[0], kk, 6)
    c1 = L.bfe(vt2, lane_, 1, 1); b3 = L.and_(vt, g16, 1); b3 = L.shl(vt, b3, 1)
    ch0 = L.xor(vt, b3, c1); c0 = L.and_(vt2, lane_, 1); c0 = L.shl(vt2, c0, 3)
    t0 = L.lshl_add(va[0], ch0, 4, base); t0 = L.add(va[0], t0, c0); t1 = L.xor(va[1], t0, 32)
    for t_, reg in ((0, t0), (1, t1)):
        l = L.tid & 63; w_ = L.tid >> 6
        kref = 128 * w_ + 8 * (l >> 4) + ((l & 15) >> 2)
        ch = (2 * t_ + ((l & 3) >> 1)) ^ (2 * ((kref >> 3) & 1))
        assert (reg.val == kref * 64 + ch * 16 + (l & 1) * 8).all()
    vm15 = v(); m_ = L.and_(vm15, lane_, 15); g16 = L.shr(vt2, lane_, 4)
    ch = L.lshl_add(vb, wave_, 4, g16)
    vbs = v(4)
    for s_ in range(4):
        c_ = L.add(vbs[s_], 4 * s_, ch); c_ = L.xor(vbs[s_], c_, m_)
        c_ = L.shl(vbs[s_], c_, 4); c_ = L.lshl_add(vbs[s_], m_, 11, c_); L.add(vbs[s_], LDS_H, c_)
    vr = v()
    t = L.shl(vr, wave_, 11); t = L.lshl_add(vr, m_, 7, t); g16 = L.shr(vt2, lane_, 4); t = L.lshl_add(vr, g16, 4, t); L.add(vr, LDS_R, t)
    f = v(32, 4)
    k.stamp(4)
    a('s_waitcnt vmcnt(4)')
    k.stamp(5)
    for i in range(2):
        for j in range(8): unpack_bf16(a, f[16 * i + 2 * j], f[16 * i + 2 * j + 1], x[8 * i + j])
    for i in range(2):
        for j in range(16): a.v_fma_f32(f[16 * i + j], f[16 * i + j], RS[2 * i], RS[2 * i + 1])
    sm, so = s(), s()
    a.s_lshl_b32(so, swv, 13)
    for j in range(8):
        a.s_add_u32('m0', so, LDS_W + 1024 * j)
        if j: a.s_add_u32(sm, so, 1024 * j)
        a.buffer_load_dwordx4(vw, rW, sm if j else so, mods='offen lds')
    k.stamp(7)
    a('s_waitcnt vmcnt(8)')
    for j in range(4):
        a.v_add_f32(MP[j], MP[j], MP[4 + j]); a.v_add_f32(MP[8 + j], MP[8 + j], MP[12 + j]); a.v_add_f32(MP[j], MP[j], MP[8 + j])
        round_bf16(a, MP[j])
    labg = k.lbl('noadd')
    a.s_cmp_ge_u32(swv, 4); a.s_cbranch_scc0(labg)
    for j in range(4):
        a.v_add_f32(MP[j], 1.0, MP[j]); round_bf16(a, MP[j])
    a.label(labg)
    a.ds_write_b128(vmp, MP.sub(0, 4), mods=f'offset:{LDS_M}')
    a('s_waitcnt lgkmcnt(0)\ns_barrier')
    sa = v(16, 4); g = v(16, 4)
    for q, (dst, off) in enumerate(((sa.sub(0, 8), 0), (sa.sub(8, 8), 2048), (g.sub(0, 8), 4096), (g.sub(8, 8), 6144))):
        a.ds_read_b128(dst.sub(0, 4), vm, mods=f'offset:{LDS_M + off}'); a.ds_read_b128(dst.sub(4, 4), vm, mods=f'offset:{LDS_M + off + 16}')
    a('s_waitcnt lgkmcnt(0)')
    for i in range(2):
        for j in range(16): a.v_fma_f32(f[16 * i + j], f[16 * i + j], g[j], sa[j])
        for j in range(8): a.v_cvt_pk_bf16_f32(x[8 * i + j], f[16 * i + 2 * j], f[16 * i + 2 * j + 1])
    for i in range(2):
        a.ds_write_b128(vh[i], x.sub(8 * i, 4)); a.ds_write_b128(vh[i], x.sub(8 * i + 4, 4), mods='offset:1024')
    lab = k.lbl('nostore')
    a.s_lshr_b32('s3', swv, 2); a.s_cmp_eq_u32('s3', ssel); a.s_cbranch_scc0(lab)
    for i in range(2):
        for h in range(2):
            a.buffer_store_dwordx4(x.sub(8 * i + 4 * h, 4), vx, rH, 0, mods=f'offen offset:{2048 * i + 1024 * h} {ST}')
    a('s_waitcnt vmcnt(4)')
    lab3 = k.lbl('wdone'); a.s_branch(lab3)
    a.label(lab)
    a('s_waitcnt vmcnt(0)')
    a.label(lab3)
    k.stamp(1)
    a('s_waitcnt lgkmcnt(0)\ns_barrier')
    k.stamp(2)
    A = f; B = sa; acc2 = g.sub(0, 8)
    for s_ in range(4):
        a.ds_read_b128(B.sub(4 * s_, 4), vbs[s_])
        for t_ in range(2):
            for h in range(2):
                a.ds_read_b64_tr_b16(A.sub(8 * s_ + 4 * t_ + 2 * h, 2), va[t_], mods=f'offset:{LDS_W + (32 * s_ + 4 * h) * 64}')
    for s_ in range(4):
        a(f's_waitcnt lgkmcnt({5 * (3 - s_)})')
        for t_ in range(2):
            a.v_mfma_f32_16x16x32_bf16(acc2.sub(4 * t_, 4), A.sub(8 * s_ + 4 * t_, 4), B.sub(4 * s_, 4), 0 if s_ == 0 else acc2.sub(4 * t_, 4))
    a.ds_write_b128(vr, acc2.sub(0, 4)); a.ds_write_b128(vr, acc2.sub(4, 4), mods='offset:64')
    a('s_waitcnt lgkmcnt(0)\ns_barrier')
    vr2 = v(); L.shl(vr2, k.tid, 2)
    pp = g.sub(8, 8)
    for i in range(8): a.ds_read_b32(pp[i], vr2, mods=f'offset:{LDS_R + 2048 * i}')
    a('s_waitcnt lgkmcnt(0)')
    for n in (4, 2, 1):
        for i in range(n): a.v_add_f32(pp[i], pp[i], pp[i + n])
    round_bf16(a, pp[0])
    a.ds_write_b32(vr2, pp[0], mods=f'offset:{LDS_S}')
    a('s_waitcnt lgkmcnt(0)\ns_barrier')
    k.stamp(3)
    a.s_cmp_ge_u32(swv, 1); a.s_cbranch_scc1(f'L_{k.name}_end')
    sT, sb2 = s(), s()
    a.s_lshr_b32(sT, sR, 1); a.s_lshl_b32(sT, sT, 11)
    a.s_and_b32(sb2, sR, 1)
    labV = k.lbl('v')
    o = sa.sub(0, 8); vo = v()
    a.s_cmp_eq_u32(ssel, 0); a.s_cbranch_scc0(labV)
    rK = k.srd(pws, WS_KF, 131072, dst=rX)
    key = L.and_(vt, lane_, 15); c_ = L.bfe(vt2, lane_, 4, 1); t = L.shl(vr, key, 7); t = L.lshl_add(vr, c_, 6, t)
    h_ = L.shr(vo, lane_, 5); L.lshl_add(vr, h_, 4, t)
    a.ds_read_b128(o.sub(0, 4), vr, mods=f'offset:{LDS_S}'); a.ds_read_b128(o.sub(4, 4), vr, mods=f'offset:{LDS_S + 32}')
    t = L.lshl_add(vo, h_, 5, key); t = L.shl(vo, t, 4); L.lshl_add(vo, c_, 10, t)
    a.s_lshl_b32(sb2, sb2, 8); a.s_add_u32(sT, sT, sb2)
    a('s_waitcnt lgkmcnt(0)')
    q = v(2)
    a.v_mul_f32(q[0], o[0], o[0])
    for j in range(1, 8): a.v_fmac_f32(q[0], o[j], o[j])
    for j in range(4): a.v_cvt_pk_bf16_f32(o[j], o[2 * j], o[2 * j + 1])
    a.buffer_store_dwordx4(o.sub(0, 4), vo, rK, sT, mods=f'offen {ST}')
    a.v_mov_b32(q[1], q[0]); a.v_permlane16_swap_b32(q[0], q[1]); a.v_add_f32(q[0], q[0], q[1])
    a.v_mov_b32(q[1], q[0]); a.v_permlane32_swap_b32(q[0], q[1]); a.v_add_f32(q[0], q[0], q[1])
    for m in ('row_ror:1', 'row_ror:2', 'row_ror:4', 'row_ror:8'):
        a.v_max_f32_dpp(q[0], q[0], q[0], mods=f'{m} row_mask:0xf bank_mask:0xf')
    rKM = k.srd(pws, WS_KM, 512, dst=rM)
    a.s_lshl_b32(sb2, sR, 2)
    a.v_mov_b32(vr, 0)
    a.v_cmp_eq_u32('vcc', 0, lane); a.s_and_saveexec_b64(sv, 'vcc')
    a.buffer_store_dword(q[0], vr, rKM, sb2, mods='offen')
    a.s_branch(f'L_{k.name}_end')
    a.label(labV)
    rV = k.srd(pws, WS_VF, 131072, dst=rX)
    d_ = L.and_(vt, lane_, 31); h_ = L.shr(vt2, lane_, 5); t = L.shl(vr, d_, 2); L.lshl_add(vr, h_, 9, t)
    for t_ in range(8): a.ds_read_b32(o[t_], vr, mods=f'offset:{LDS_S + (8 * (t_ >> 2) + (t_ & 3)) * 128}')
    L.shl(vo, lane_, 4)
    a.s_lshl_b32(sb2, sb2, 10); a.s_add_u32(sT, sT, sb2)
    a('s_waitcnt lgkmcnt(0)')
    for j in range(4): a.v_cvt_pk_bf16_f32(o[j], o[2 * j], o[2 * j + 1])
    a.buffer_store_dwordx4(o.sub(0, 4), vo, rV, sT, mods=f'offen {ST}')
    return k
```

```python
from gemm import *
import os
from k12 import silu_bf16, ST
from k456 import xcd_tile, roles

STO = os.environ.get('STO', '')
SCALE = 32 ** -0.5 * 1.4426950408889634

def gen_k3():
    QSLOT = 24576; QNS = 4; LDS_Q = 0
    CT = 8
    KVSLOT = CT * 4096; NCH = 64 // CT
    KVS = [0, KVSLOT, 2 * KVSLOT]
    LDS_G = 3 * KVSLOT
    LDS_Q = 2 * KVSLOT; QSLOT = 24576; QNS = 4
    LDS_QX = 0
    k = Kern('k3_attn_kernel', 512, 2 * KVSLOT + 4 * 24576, 256)
    a, L, v, s = k.a, k.L, k.v, k.s
    k.exit_if_wg_ge(256)
    k.stamp_init(2)
    pws = k.ptr('ws'); pwq = k.ptr('wq')
    smt, snt = xcd_tile(k, 4, 4, 8)
    lane_, wave_, w4_, swv, sw4 = roles(k)
    vt, vt2, vt3 = v(), v(), v()
    l = L.tid & 63; w = L.tid >> 6
    sro, sco, sw1k = s(), s(), s()
    a.s_lshl_b32(sro, smt, 7 + 11); a.s_lshl_b32(sco, snt, 7); a.s_lshl_b32(sw1k, swv, 10)
    a('s_waitcnt lgkmcnt(0)')
    Bq = v(8, 4); vl16 = v(); L.shl(vl16, lane_, 4)
    rK = k.srd(pws, WS_KF, 131072); rV = k.srd(pws, WS_VF, 131072)
    vkv = v(); L.shl(vkv, k.tid, 4)
    sKV = s()
    sKVm, sKVs = s(), s()
    def kv_begin(slot_sgpr):
        a.s_add_u32(sKVm, slot_sgpr, sw1k); a.s_mov_b32(sKVs, sKV); a.s_add_u32(sKV, sKV, CT * 2048)
    def kv_piece(i):
        n = CT // 4
        srd, base, j = (rK, 0, i) if i < n else (rV, CT * 2048, i - n)
        a.s_add_u32('m0', sKVm, base + 8192 * j)
        if j: a.s_add_u32('s3', sKVs, 8192 * j)
        a.buffer_load_dwordx4(vkv, srd, 's3' if j else sKVs, mods='offen lds')
    def kv_issue(slot_sgpr):
        kv_begin(slot_sgpr)
        for i in range(2 * (CT // 4)): kv_piece(i)
    NKV = 2 * (CT // 4)
    S = [v(16, 4), v(16, 4)]
    KV32 = v(32, 4)
    Kf = [KV32.sub(0, 8), KV32.sub(8, 8)]; Vf = [KV32.sub(16, 8), KV32.sub(24, 8)]
    O = v(16, 4); negm = v(16, 4)
    lo, hi = v(), v()
    sc = s()
    sSlotA, sSlotB, sSlotC = s(), s(), s()
    rKM = k.srd(pws, WS_KM, 512)
    KM = v(2, 2); L.shl(vt, lane_, 3)
    a.buffer_load_dwordx2(KM, vt, rKM, 0, mods='offen')
    labQL, labQJ = k.lbl('qload'), k.lbl('qjoin')
    mkq, mks = v.mark(), s.mark()
    a.s_cmp_ge_u32(swv, 4); a.s_cbranch_scc1(labQL)
    a('s_setprio 1')
    bX = v(4); bW = v(2); tw = v(); kqv = v(); aW = v(2); aX = v(4)
    r = L.and_(vt2, lane_, 31); row = L.lshl_add(vt, w4_, 5, r)
    z = L.bfe(vt2, row, 1, 3); h = L.shr(vt3, lane_, 5)
    for st in range(4):
        c = L.add(bX[st], 2 * st, h); c = L.xor(bX[st], c, z); c = L.shl(bX[st], c, 4); L.lshl_add(bX[st], row, 7, c)
    kq = L.shr(vt, lane_, 5); kq = L.shl(vt, kq, 3); r = L.bfe(vt2, lane_, 2, 2); kq = L.add(kqv, kq, r)
    for hh in range(2):
        sw = L.and_(vt2, kq, 2); sw = L.shl(vt2, sw, 1)
        x1 = L.bfe(tw, lane_, 4, 1); chn = L.shl(vt3, x1, 1); x2 = L.bfe(tw, lane_, 1, 1); chn = L.add(vt3, chn, x2)
        if hh: chn = L.add(vt3, 4, chn)
        chn = L.xor(vt3, chn, sw); b = L.shl(vt, kq, 7); b = L.lshl_add(vt, chn, 4, b); c0 = L.and_(vt2, lane_, 1); b = L.lshl_add(bW[hh], c0, 3, b)
        b = L.add(bW[hh], 16384, b)
        kqr = 8 * (l >> 5) + ((l & 15) >> 2); nb = 64 * hh + 32 * ((l >> 4) & 1) + 8 * (l & 3)
        assert (b.val == 16384 + kqr * 128 + (((nb >> 4) ^ (4 * ((kqr >> 1) & 1))) << 4) + (nb & 15)).all()
    Sq = [S[0], S[1]]
    fB = [KV32.sub(0, 16), KV32.sub(16, 16)]; fA = [[O, negm], [v(16, 4), v(16, 4)]]
    for i in range(16): a.v_mov_b32(Sq[0][i], 0); a.v_mov_b32(Sq[1][i], 0)
    sQs = s()
    def qreads(p):
        out = []
        for st in range(4):
            out.append(f'ds_read_b128 {fB[p].sub(4 * st, 4)}, {aX[st]}')
            for hh in range(2):
                for half in range(2): out.append(f'ds_read_b64_tr_b16 {fA[p][hh].sub(4 * st + 2 * half, 2)}, {aW[hh]} offset:{(16 * st + 4 * half) * 128}')
        return out
    def qmf(p):
        return [f'v_mfma_f32_32x32x16_bf16 {Sq[hh]}, {fA[p][hh].sub(4 * st, 4)}, {fB[p].sub(4 * st, 4)}, {Sq[hh]}' for st in range(4) for hh in range(2)]
    qaddr = [f'v_add_u32 {aX[st]}, {sQs}, {bX[st]}' for st in range(4)] + [f'v_add_u32 {aW[hh]}, {sQs}, {bW[hh]}' for hh in range(2)]
    qadv = [f's_add_u32 {sQs}, {sQs}, {QSLOT}', f's_cmp_ge_u32 {sQs}, {LDS_Q + QNS * QSLOT}', f's_cselect_b32 s3, {QNS * QSLOT}, 0', f's_sub_u32 {sQs}, {sQs}, s3']
    a.s_mov_b32(sQs, LDS_Q)
    for x in qaddr: a(x)
    a('s_barrier')
    k.stamp(5)
    for x in qreads(0): a(x)
    a.s_mov_b32(sc, 8)
    lab = k.lbl('ql'); a.label(lab)
    for p in (0, 1):
        a('s_waitcnt lgkmcnt(0)')
        a('s_barrier')
        for x in qadv + qaddr: a(x)
        mf = qmf(p); ot = qreads(1 - p)
        j = 0
        for i, x in enumerate(mf):
            a(x)
            for y in ot[j:j + 3]: a(y)
            j += 3
        for y in ot[j:]: a(y)
    a.s_sub_u32(sc, sc, 1); a.s_cmp_lg_u32(sc, 0); a.s_cbranch_scc1(lab)
    a('s_waitcnt lgkmcnt(0)')
    PQ = fA[1][0]
    for hh in range(2):
        for i in range(16): a.v_mul_f32(Sq[hh][i], fhex(SCALE), Sq[hh][i])
        dst = Bq if hh == 0 else PQ.sub(0, 8)
        for i in range(8): a.v_cvt_pk_bf16_f32(dst[i], Sq[hh][2 * i], Sq[hh][2 * i + 1])
    a('s_setprio 0')
    a('s_barrier')
    vqx = aX[0]; t = L.shl(vqx, w4_, 11); t = L.lshl_add(vqx, lane_, 4, t); L.add(vqx, LDS_Q, t)
    a.ds_write_b128(vqx, PQ.sub(0, 4)); a.ds_write_b128(vqx, PQ.sub(4, 4), mods='offset:1024')
    a('s_waitcnt lgkmcnt(0)')
    a('s_barrier')
    a.s_branch(labQJ)
    a.label(labQL)
    v.release(mkq); s.release(mks)
    vX = v(4); vW = v(2); vkv4 = v(2)
    r0 = L.shr(vt, lane_, 3); r0 = L.lshl_add(vt, w4_, 3, r0)
    z = L.bfe(vt2, r0, 1, 3); c = L.and_(vt3, lane_, 7); c = L.xor(vt2, c, z)
    b = L.shl(vt, r0, 11); b = L.lshl_add(vX[0], c, 4, b)
    for j in range(1, 4): L.add(vX[j], 32 * 2048 * j, b)
    kk = L.shr(vt, lane_, 3); kk = L.lshl_add(vt, w4_, 3, kk); pos = L.and_(vt2, lane_, 7); sw = L.and_(vt3, kk, 2); sw = L.shl(vt3, sw, 1); cc = L.xor(vt2, pos, sw)
    b = L.shl(vt, kk, 11); b = L.lshl_add(vW[0], cc, 4, b); L.add(vW[1], 32 * 2048, b)
    t = L.shl(vkv4[0], w4_, 10); t = L.lshl_add(vkv4[0], lane_, 4, t); L.add(vkv4[1], 4096, t)
    rX = k.srd(pws, WS_H1, 128 * 2048, dyn_off=sro)
    rWq = k.srd(pwq, 0, 1024 * 2048, dyn_off=sco); a.s_sub_u32(rWq[2], 1024 * 2048, sco)
    sKX, sKW, sM, sMe, sw4k = s(), s(), s(), s(), s()
    a.s_lshl_b32(sw4k, sw4, 10); a.s_add_u32(sM, sw4k, LDS_Q); a.s_add_u32(sMe, sM, QNS * QSLOT); a.s_mov_b32(sKX, 0); a.s_mov_b32(sKW, 0)
    def q_issue():
        for j in range(4):
            a.s_add_u32('m0', sM, 4096 * j); a.buffer_load_dwordx4(vX[j], rX, sKX, mods='offen lds')
        for j in range(2):
            a.s_add_u32('m0', sM, 16384 + 4096 * j); a.buffer_load_dwordx4(vW[j], rWq, sKW, mods='offen lds')
        a.s_add_u32(sKX, sKX, 128); a.s_add_u32(sKW, sKW, 64 * 2048)
        a.s_add_u32(sM, sM, QSLOT); a.s_cmp_ge_u32(sM, sMe); a.s_cselect_b32('s3', QNS * QSLOT, 0); a.s_sub_u32(sM, sM, 's3')
    for i in range(QNS): q_issue()
    a(f's_waitcnt vmcnt({6 * (QNS - 1)})')
    a('s_barrier')
    a.s_mov_b32(sc, 16 - QNS)
    lab = k.lbl('qll'); a.label(lab)
    a(f's_waitcnt vmcnt({6 * (QNS - 2)})')
    a('s_barrier')
    q_issue()
    a.s_sub_u32(sc, sc, 1); a.s_cmp_lg_u32(sc, 0); a.s_cbranch_scc1(lab)
    for ch in range(2):
        for (srd, base) in ((rK, 0), (rV, CT * 2048)):
            for j in range(CT // 4):
                for hv in range(2):
                    a.s_add_u32('m0', sw4k, KVS[ch] + base + 8192 * j + 4096 * hv)
                    a.s_mov_b32('s3', ch * CT * 2048 + 8192 * j)
                    a.buffer_load_dwordx4(vkv4[hv], srd, 's3', mods='offen lds')
    NKVP = 2 * 2 * (CT // 4) * 2
    for st in range(16 - QNS, 16):
        rem = max(0, 15 - (st + 1))
        a(f's_waitcnt vmcnt({rem * 6 + NKVP})')
        a('s_barrier')
    a('s_barrier')
    a('s_barrier')
    vqx = vX[0]; t = L.shl(vqx, w4_, 11); t = L.lshl_add(vqx, lane_, 4, t); L.add(vqx, LDS_Q, t)
    a.ds_read_b128(Bq.sub(0, 4), vqx); a.ds_read_b128(Bq.sub(4, 4), vqx, mods='offset:1024')
    a('s_waitcnt lgkmcnt(0)')
    a.label(labQJ)
    v.release(mkq); s.release(mks)
    k.stamp(1)
    a.s_mov_b32(sKV, 2 * CT * 2048)
    a.s_mov_b32(sSlotA, KVS[0]); a.s_mov_b32(sSlotB, KVS[1])
    pc = k.ptr('c'); pwm = k.ptr('wmod'); pwo = k.ptr('wo'); pw1 = k.ptr('w1'); pw2 = k.ptr('w2')
    a('s_waitcnt vmcnt(0) lgkmcnt(0)')
    skq, scg = s(), s()
    a.s_lshr_b32(skq, 's2', 6); a.s_and_b32(scg, 's2', 63)
    rWm = k.srd(pwm, 0, 1024 * 12288); rC = k.srd(pc, 0, 2048)
    vg, vgc = v(), v()
    rg = L.shr(vt, k.tid, 3); t = L.mul(vg, 12288, rg); c1 = L.and_(vt2, k.tid, 7); L.lshl_add(vg, c1, 4, t); L.shl(vgc, rg, 1)
    GW = v(16, 4); GC = v(4)
    sgo, sgc = s(), s()
    a.s_mul_i32(sgo, skq, 256 * 12288); a.s_lshl_b32('s3', scg, 7); a.s_add_u32(sgo, sgo, 's3'); a.s_add_u32(sgo, sgo, 4096)
    a.s_lshl_b32(sgc, skq, 9)
    for i in range(4): a.buffer_load_ushort(GC[i], vgc, rC, sgc, mods=f'offen offset:{128 * i}')
    vpf, vdum = v(), v()
    t = L.and_(vt, lane_, 7); t = L.lshl_add(vt, wave_, 3, t); L.shl(vpf, t, 7)
    sv = s(2); spf = s(); rP = s(4); rPF = s(4); spo = s()
    a.s_cmp_lt_u32('s2', 32)
    a.s_cselect_b32(rPF[0], pwo[0], pw1[0]); a.s_cselect_b32(rPF[1], pwo[1], pw1[1]); a.s_cselect_b32(spo, 0, 32)
    a.s_cmp_lt_u32('s2', 144)
    a.s_cselect_b32(rPF[0], rPF[0], pw2[0]); a.s_cselect_b32(rPF[1], rPF[1], pw2[1]); a.s_cselect_b32(spo, spo, 144)
    a.s_sub_u32(spo, 's2', spo); a.s_lshl_b32(spo, spo, 16)
    a.s_add_u32(rPF[0], rPF[0], spo); a.s_addc_u32(rPF[1], rPF[1], 0); a.s_mov_b32(rPF[2], 65536); a.s_mov_b32(rPF[3], '0x20000')
    a.s_mov_b32(spo, 0)
    def pf_issue():
        a.s_mov_b64(sv, 'exec'); a.s_mov_b64('exec', 255)
        a.buffer_load_dword(vdum, vpf, rPF, spo, mods='offen')
        a.s_mov_b64('exec', sv)
        a.s_add_u32(spo, spo, 8192)
    def gw_issue(step):
        a.s_add_u32('s3', sgo, hex(64 * 12288 * step)); a.buffer_load_dwordx4(GW.sub(4 * step, 4), vg, rWm, 's3', mods='offen')
    q2 = v(2)
    for i in range(8):
        unpack_bf16(a, lo, hi, Bq[i])
        if i == 0: a.v_mul_f32(q2[0], lo, lo)
        else: a.v_fmac_f32(q2[0], lo, lo)
        a.v_fmac_f32(q2[0], hi, hi)
    a.v_mov_b32(q2[1], q2[0]); a.v_permlane32_swap_b32(q2[0], q2[1]); a.v_add_f32(q2[0], q2[0], q2[1])
    a.v_max_f32(KM[0], KM[0], KM[1])
    for m in ('row_ror:1', 'row_ror:2', 'row_ror:4', 'row_ror:8'): a.v_max_f32_dpp(KM[0], KM[0], KM[0], mods=f'{m} row_mask:0xf bank_mask:0xf')
    a.v_mov_b32(KM[1], KM[0]); a.v_permlane16_swap_b32(KM[0], KM[1]); a.v_max_f32(KM[0], KM[0], KM[1])
    a.v_mov_b32(KM[1], KM[0]); a.v_permlane32_swap_b32(KM[0], KM[1]); a.v_max_f32(KM[0], KM[0], KM[1])
    a.v_mul_f32(q2[0], q2[0], KM[0]); a.v_sqrt_f32(q2[0], q2[0])
    a.v_mul_f32(q2[0], fhex(-1.002), q2[0])
    for i in range(16): a.v_mov_b32(negm[i], q2[0])
    ones = v(4, 4)
    m_ = L.and_(vt, lane_, 15); g_ = L.bfe(vt2, lane_, 4, 1); mb = L.bfe(vt3, lane_, 2, 1); e = L.xor(vt2, g_, mb)
    m3 = L.and_(vt, lane_, 3); e = L.or_(vt, m3, e)
    a.v_cmp_eq_u32('vcc', 0, vt)
    a.v_mov_b32(vt2, '0x3f803f80')
    a.v_cndmask_b32(ones[0], 0, vt2, 'vcc')
    for i in range(1, 4): a.v_mov_b32(ones[i], ones[0])
    Lc = v(4, 4); Pb = v(8, 4)
    aC, aN = v(), v()
    k.stamp(2)
    for i in range(16): a.v_mov_b32(O[i], 0)
    for i in range(4): a.v_mov_b32(Lc[i], 0)
    for i in range(4, 8): a.v_mov_b32(Pb[i], 0)
    a.s_mov_b32(sSlotC, KVS[2])
    a.v_add_u32(aC, sSlotA, vl16); a.v_add_u32(aN, sSlotB, vl16)
    pf_issue()
    a('s_barrier')
    def rdK(dst, areg, tt):
        return [f'ds_read_b128 {dst.sub(4 * c, 4)}, {areg} offset:{tt * 2048 + c * 1024}' for c in range(2)]
    def rdV(dst, areg, tt):
        return [f'ds_read_b128 {dst.sub(4 * b, 4)}, {areg} offset:{CT * 2048 + tt * 2048 + b * 1024}' for b in range(2)]
    for x in rdK(Kf[0], aC, 0) + rdK(Kf[1], aC, 1) + rdV(Vf[0], aC, 0): a(x)
    for i in range(8): a.v_mov_b32(Vf[1][i], 0)
    a('s_waitcnt lgkmcnt(4)')
    a.v_mfma_f32_32x32x16_bf16(S[0], Kf[0].sub(0, 4), Bq.sub(0, 4), negm)
    a.v_mfma_f32_32x32x16_bf16(S[0], Kf[0].sub(4, 4), Bq.sub(4, 4), S[0])
    a('s_nop 7')
    aS = [aC, aN, v()]
    a.v_add_u32(aS[2], KVS[2], vl16)
    labG = k.lbl('gemv'); labGr = k.lbl('gemvret')
    for c in range(NCH):
        cur_a, nxt_a = aS[c % 3], aS[(c + 1) % 3]
        for tt in range(CT):
            cur, nxt = S[tt & 1], S[(tt + 1) & 1]
            Kn = Kf[(tt + 1) & 1]; Vc = Vf[tt & 1]; Vp = Vf[(tt + 1) & 1]
            a('s_waitcnt lgkmcnt(0)')
            if tt == CT - 2 and c + 1 < NCH:
                nbg = 5 if c == 0 else (2 if c - 1 <= 3 else 1)
                a(f's_waitcnt vmcnt({nbg})')
                a('s_barrier')
                if c + 2 < NCH:
                    a.s_add_u32(sKVm, sw1k, KVS[(c + 2) % 3]); a.s_mov_b32(sKVs, (c + 2) * CT * 2048)
            def bg_point():
                if tt >= CT - 2: p, i = c, tt - (CT - 2)
                else: p, i = c - 1, tt + 2
                if p < 0: return
                if i < 4:
                    if p + 2 < NCH: kv_piece(i)
                elif i == 4:
                    if p <= 3: gw_issue(p)
                elif i == 5:
                    pf_issue()
            rk = rdK(Kf[tt & 1], cur_a if tt + 2 < CT else nxt_a, (tt + 2) % CT)
            rv = rdV(Vp, cur_a if tt + 1 < CT else nxt_a, (tt + 1) % CT)
            E = lambda i: a.v_exp_f32(cur[i], cur[i])
            C = lambda i: a.v_cvt_pk_bf16_f32(Pb[i], cur[2 * i], cur[2 * i + 1])
            a.v_mfma_f32_32x32x16_bf16(nxt, Kn.sub(0, 4), Bq.sub(0, 4), negm)
            a(rk[0]); a(rk[1])
            E(0); E(1); E(2); E(3)
            a.v_mfma_f32_32x32x16_bf16(O, Vp.sub(4, 4), Pb.sub(4, 4), O)
            C(0); C(1); E(4); E(5); E(6)
            a.v_mfma_f32_16x16x32_bf16(Lc, ones, Pb.sub(4, 4), Lc)
            a(rv[0]); a(rv[1])
            E(7); C(2); C(3)
            bg_point()
            a.v_mfma_f32_32x32x16_bf16(nxt, Kn.sub(4, 4), Bq.sub(4, 4), nxt)
            E(8); E(9); E(10)
            a.v_mfma_f32_32x32x16_bf16(O, Vc.sub(0, 4), Pb.sub(0, 4), O)
            E(11); C(4); C(5); E(12); E(13)
            a.v_mfma_f32_16x16x32_bf16(Lc, ones, Pb.sub(0, 4), Lc)
            E(14); E(15); C(6); C(7)
        if os.environ.get('CHST'): k.stamp(7 + c)
        if c == 5:
            a.s_branch(labG)
            a.label(labGr)
    a.v_mfma_f32_32x32x16_bf16(O, Vf[(CT - 1) & 1].sub(4, 4), Pb.sub(4, 4), O)
    a.v_mfma_f32_16x16x32_bf16(Lc, ones, Pb.sub(4, 4), Lc)
    k.stamp(3)
    labDone = k.lbl('done'); labSlow = k.lbl('slow')
    a.v_mov_b32(vt, fhex(2.0 ** -60))
    a('s_nop 7')
    a.v_cmp_nge_f32('vcc', Lc[0], vt)
    a.s_cmp_lg_u64('vcc', 0)
    a.s_cbranch_scc1(labSlow)
    a.label(labDone)
    a.v_rcp_f32(vt, Lc[0])
    for i in range(16): a.v_mul_f32(O[i], O[i], vt)
    for i in range(8): a.v_cvt_pk_bf16_f32(Pb[i], O[2 * i], O[2 * i + 1])
    for i in (0, 2):
        a.v_permlane32_swap_b32(Pb[2 * i], Pb[2 * i + 2]); a.v_permlane32_swap_b32(Pb[2 * i + 1], Pb[2 * i + 3])
    rO = k.srd(pws, WS_O, 128 * 2048, dyn_off=sro, dst=rKM)
    vo = v()
    qt = L.and_(vt, wave_, 3); r = L.and_(vt2, lane_, 31); row = L.lshl_add(vt, qt, 5, r); t = L.shl(vo, row, 11)
    hh = L.shr(vt, wave_, 2); t = L.lshl_add(vo, hh, 6, t); h = L.shr(vt, lane_, 5); L.lshl_add(vo, h, 4, t)
    a.buffer_store_dwordx4(Pb.sub(0, 4), vo, rO, sco, mods=f'offen {STO}'); a.buffer_store_dwordx4(Pb.sub(4, 4), vo, rO, sco, mods=f'offen offset:32 {STO}')
    k.stamp(4)
    a.s_branch(f'L_{k.name}_end')
    a.label(labSlow)
    a('s_waitcnt lgkmcnt(0)')
    M = O[0]; a.v_mov_b32(M, '0xff800000')
    sT = s()
    a.s_mov_b32(sT, 0)
    labm = k.lbl('mloop')
    a.label(labm)
    a.buffer_load_dwordx4(Kf[0].sub(0, 4), vl16, rK, sT, mods='offen'); a.buffer_load_dwordx4(Kf[0].sub(4, 4), vl16, rK, sT, mods='offen offset:1024')
    a('s_waitcnt vmcnt(0)')
    a.v_mfma_f32_32x32x16_bf16(S[0], Kf[0].sub(0, 4), Bq.sub(0, 4), 0)
    a.v_mfma_f32_32x32x16_bf16(S[0], Kf[0].sub(4, 4), Bq.sub(4, 4), S[0])
    for i in range(16): a.v_max_f32(M, M, S[0][i])
    a.s_add_u32(sT, sT, 2048); a.s_cmp_lt_u32(sT, 131072); a.s_cbranch_scc1(labm)
    a.v_mov_b32(vt, M); a.v_permlane32_swap_b32(M, vt); a.v_max_f32(M, M, vt)
    a.v_sub_f32(M, 0, M)
    for i in range(16): a.v_mov_b32(negm[i], M)
    for i in range(16): a.v_mov_b32(O[i], 0)
    for i in range(4): a.v_mov_b32(Lc[i], 0)
    a.s_mov_b32(sT, 0)
    labs = k.lbl('sloop')
    a.label(labs)
    a.buffer_load_dwordx4(Kf[0].sub(0, 4), vl16, rK, sT, mods='offen'); a.buffer_load_dwordx4(Kf[0].sub(4, 4), vl16, rK, sT, mods='offen offset:1024')
    a.buffer_load_dwordx4(Vf[0].sub(0, 4), vl16, rV, sT, mods='offen'); a.buffer_load_dwordx4(Vf[0].sub(4, 4), vl16, rV, sT, mods='offen offset:1024')
    a('s_waitcnt vmcnt(0)')
    a.v_mfma_f32_32x32x16_bf16(S[0], Kf[0].sub(0, 4), Bq.sub(0, 4), negm)
    a.v_mfma_f32_32x32x16_bf16(S[0], Kf[0].sub(4, 4), Bq.sub(4, 4), S[0])
    for i in range(16): a.v_exp_f32(S[0][i], S[0][i])
    for i in range(8): a.v_cvt_pk_bf16_f32(Pb[i], S[0][2 * i], S[0][2 * i + 1])
    a.v_mfma_f32_32x32x16_bf16(O, Vf[0].sub(0, 4), Pb.sub(0, 4), O)
    a.v_mfma_f32_32x32x16_bf16(O, Vf[0].sub(4, 4), Pb.sub(4, 4), O)
    a.v_mfma_f32_16x16x32_bf16(Lc, ones, Pb.sub(0, 4), Lc)
    a.v_mfma_f32_16x16x32_bf16(Lc, ones, Pb.sub(4, 4), Lc)
    a.s_add_u32(sT, sT, 2048); a.s_cmp_lt_u32(sT, 131072); a.s_cbranch_scc1(labs)
    a.s_branch(labDone)
    a.label(labG)
    acc = v(8, 4); e4 = v(4)
    silu_bf16(a, [GC[i] for i in range(4)], e4)
    for i in range(4):
        for j in range(4):
            unpack_bf16(a, lo, hi, GW[4 * i + j])
            if i == 0:
                a.v_mul_f32(acc[2 * j], GC[i], lo); a.v_mul_f32(acc[2 * j + 1], GC[i], hi)
            else:
                a.v_fmac_f32(acc[2 * j], GC[i], lo); a.v_fmac_f32(acc[2 * j + 1], GC[i], hi)
    for j in range(8): a.v_add_f32_dpp(acc[j], acc[j], acc[j], mods='row_ror:8 row_mask:0xf bank_mask:0xf')
    va = v()
    t = L.shr(va, k.tid, 4); t = L.shl(va, t, 8); t3 = L.and_(vt, k.tid, 7); t = L.lshl_add(va, t3, 5, t); L.add(va, LDS_G, t)
    L.and_(vt, k.tid, 15)
    a.v_cmp_gt_u32('vcc', 8, vt); a.s_and_saveexec_b64(sv, 'vcc')
    a.ds_write_b128(va, acc.sub(0, 4)); a.ds_write_b128(va, acc.sub(4, 4), mods='offset:16')
    a.s_mov_b64('exec', sv)
    a('s_waitcnt lgkmcnt(0)\ns_barrier')
    a.s_cmp_eq_u32(swv, 0); a.s_cbranch_scc0(labGr)
    t = L.shl(va, lane_, 2); L.add(va, LDS_G, t)
    for i in range(16): a.ds_read_b32(GW[i], va, mods=f'offset:{256 * i}')
    R2 = S[0] if False else None
    for i in range(8): a.ds_read_b32(acc[i], va, mods=f'offset:{256 * (16 + i)}')
    a('s_waitcnt lgkmcnt(0)')
    for i in range(8): a.v_add_f32(GW[i], GW[i], acc[i])
    for i in range(8): a.ds_read_b32(acc[i], va, mods=f'offset:{256 * (24 + i)}')
    a('s_waitcnt lgkmcnt(0)')
    for i in range(8): a.v_add_f32(GW[8 + i], GW[8 + i], acc[i])
    for n in (8, 4, 2, 1):
        for i in range(n): a.v_add_f32(GW[i], GW[i], GW[i + n])
    rM = k.srd(pws, WS_MP2, 4 * 4096 * 4, dst=rP)
    a.s_lshl_b32(spf, skq, 14); a.s_lshl_b32('s3', scg, 8); a.s_add_u32(spf, spf, 's3')
    L.shl(va, lane_, 2)
    a.buffer_store_dword(GW[0], va, rM, spf, mods='offen')
    a.s_branch(labGr)
    return k
```

```python
from gemm import *
from k12 import ST
from k456 import xcd_tile, roles
import os
SCALE = 32 ** -0.5 * 1.4426950408889634

def gen_kq():
    XS = 16384; NX = 5; WSL = 8192 + 4096
    LDS_X = 0; LDS_W = NX * XS; LDS_T = 0
    LDS_T = LDS_W + 3 * WSL
    LDS_RS = LDS_T + 8192; LDS_U = LDS_RS + 1024
    k = Kern('k2_qkv_kernel', 512, LDS_U + 1024, 256)
    a, L, v, s = k.a, k.L, k.v, k.s
    k.exit_if_wg_ge(256)
    k.stamp_init(1)
    pws = k.ptr('ws'); px = k.ptr('x'); pwq = k.ptr('wq'); pk = k.ptr('wk'); pv = k.ptr('wv')
    smt, snt = xcd_tile(k, 4, 4, 8)
    lane_, wave_, w4_, swv, sw4 = roles(k)
    vt, vt2, vt3 = v(), v(), v()
    l = L.tid & 63; w = L.tid >> 6; T = L.tid
    sro, sco = s(), s()
    a.s_lshl_b32(sro, smt, 7 + 11); a.s_lshl_b32(sco, snt, 7)
    vX = v(2)
    r0 = L.shr(vt, lane_, 3); r0 = L.lshl_add(vt, wave_, 3, r0)
    z = L.bfe(vt2, r0, 1, 3); c = L.and_(vt3, lane_, 7); c = L.xor(vt2, c, z)
    b = L.shl(vt, r0, 11); b = L.lshl_add(vX[0], c, 4, b); L.add(vX[1], 64 * 2048, b)
    vW, vWk = v(), v()
    kk = L.shr(vt, k.tid, 3); c = L.and_(vt2, k.tid, 7); t = L.shl(vW, kk, 11); L.lshl_add(vW, c, 4, t)
    t = L.shl(vWk, kk, 6); L.lshl_add(vWk, c, 4, t)
    aX = v(4)
    vmp = aX[0]; L.shl(vmp, k.tid, 4)
    sKX, sKW, sKK, sM, sMe = s(), s(), s(), s(), s()
    a.s_mov_b32(sKX, 0); a.s_mov_b32(sKW, 0); a.s_mov_b32(sKK, 0)
    a.s_lshl_b32(sM, swv, 10); a.s_add_u32(sMe, sM, NX * XS)
    a('s_waitcnt lgkmcnt(0)')
    rX = k.srd(px, 0, 128 * 2048, dyn_off=sro)
    rWq = k.srd(pwq, 0, 1024 * 2048, dyn_off=sco); a.s_sub_u32(rWq[2], 1024 * 2048, sco)
    a.s_cmp_eq_u32(snt, 0)
    pw = s(2); a.s_cselect_b32(pw[0], pk[0], pv[0]); a.s_cselect_b32(pw[1], pk[1], pv[1])
    rWk = k.srd(pw, 0, 65536)
    rM = k.srd(pws, WS_MP1, 4 * 2048 * 4); rRS = k.srd(pws, WS_RS, 2048 * 8)
    WR = [v(8, 4) for _ in range(4)]
    GS = [v(2, 2), v(2, 2)]
    U1 = v(8, 4); U2 = v(8, 4); U1k = v(8, 4); U2k = v(8, 4)
    F = v(16, 4); O4 = v(8, 4)
    MP = F; RSr = O4.sub(0, 2); sv = s(2)
    skm = s(2); a.s_mov_b32(skm[0], '0x0f0f0f0f'); a.s_mov_b32(skm[1], '0x0f0f0f0f')
    def rec(fn):
        n0 = len(a.lines); fn(); out = a.lines[n0:]; del a.lines[n0:]; return out
    def wgroups(st_idx, kv):
        R = WR[st_idx % 4]
        g = [rec(lambda: (a.buffer_load_dwordx4(R.sub(0, 4), vW, rWq, sKW, mods='offen'), a.s_add_u32(sKW, sKW, 64 * 2048)))]
        if kv:
            g.append(rec(lambda: (a.s_mov_b64('exec', skm), a.buffer_load_dwordx4(R.sub(4, 4), vWk, rWk, sKK, mods='offen'), a.s_mov_b64('exec', -1), a.s_add_u32(sKK, sKK, 4096))))
        return g
    def xgroups():
        return [rec(lambda: (a.s_mov_b32('m0', sM), a.buffer_load_dwordx4(vX[0], rX, sKX, mods='offen lds'))),
                rec(lambda: (a.s_add_u32('m0', sM, 8192), a.buffer_load_dwordx4(vX[1], rX, sKX, mods='offen lds'))),
                rec(lambda: (a.s_add_u32(sKX, sKX, 128), a.s_add_u32(sM, sM, XS), a.s_cmp_ge_u32(sM, sMe), a.s_cselect_b32('s3', NX * XS, 0), a.s_sub_u32(sM, sM, 's3')))]
    def emit(gs):
        for g in gs:
            for x in g: a(x)
    vww, vwk, vwa, vwka = v(), v(), v(), v(); vtw = aX[1]
    bX = v(4); bW = v(); aW = v(); bK = v(); aK = v()
    def setup_addresses():
        kk = L.shr(vt, k.tid, 3); pos = L.and_(vt2, k.tid, 7); sw = L.and_(vt3, kk, 2); sw = L.shl(vt3, sw, 1); cc = L.xor(vt2, pos, sw)
        t = L.shl(vww, kk, 7); L.lshl_add(vww, cc, 4, t)
        kk = L.shr(vt, k.tid, 3); pos = L.and_(vt2, k.tid, 7); t = L.shl(vwk, kk, 6); t = L.lshl_add(vwk, pos, 4, t); L.add(vwk, 8192, t)
        L.add(vtw, LDS_T, L.mov(vtw, LV(vmp, T * 16)))
        r = L.and_(vt2, lane_, 31); row = L.lshl_add(vt, w4_, 5, r)
        z = L.bfe(vt2, row, 1, 3); h = L.shr(vt3, lane_, 5)
        for st in range(4):
            c = L.add(bX[st], 2 * st, h); c = L.xor(bX[st], c, z); c = L.shl(bX[st], c, 4); L.lshl_add(bX[st], row, 7, c)
        kq = L.shr(vt, lane_, 5); kq = L.shl(vt, kq, 3); r = L.bfe(vt2, lane_, 2, 2); kq = L.add(aK, kq, r)
        sw = L.and_(vt2, kq, 2); sw = L.shl(vt2, sw, 1)
        hh = L.shr(vt3, wave_, 2); chn = L.shl(vt3, hh, 2)
        x1 = L.bfe(vt, lane_, 4, 1); chn = L.lshl_add(vt3, x1, 1, chn); x2 = L.bfe(vt, lane_, 1, 1); chn = L.add(vt3, chn, x2)
        chn = L.xor(vt3, chn, sw); b = L.shl(vt, kq, 7); b = L.lshl_add(vt, chn, 4, b); c0 = L.and_(vt2, lane_, 1); b = L.lshl_add(bW, c0, 3, b)
        kqr = 8 * (l >> 5) + ((l & 15) >> 2); nb = 64 * (w >> 2) + 32 * ((l >> 4) & 1) + 8 * (l & 3)
        assert (b.val == kqr * 128 + (((nb >> 4) ^ (4 * ((kqr >> 1) & 1))) << 4) + (nb & 15)).all()
        t = L.shl(bK, kq, 6); x1 = L.bfe(vt, lane_, 4, 1); t = L.lshl_add(bK, x1, 5, t); u = L.and_(vt, lane_, 3); t = L.lshl_add(bK, u, 3, t); L.add(bK, 8192, t)
    Sq = v(16, 4); Sk = v(16, 4)
    fB = [v(16, 4), v(16, 4)]; fA = [v(16, 4), v(16, 4)]
    sWw, sXs, sWs, sc, sTo = s(), s(), s(), s(), s()
    vtb = v(); vta = vt3
    def gs_reads(p):
        return rec(lambda: (a.v_add_u32(vta, sTo, vtb), a.ds_read_b32(GS[p][0], vta), a.ds_read_b32(GS[p][1], vta, mods='offset:4096'), a.s_add_u32(sTo, sTo, 256), a.s_min_u32(sTo, sTo, 3840)))
    def conv_lines(st_idx, gi, kv, first):
        R = WR[st_idx % 4]
        def part(Rs, Fs, Os, Ua, Ub):
            for j in range(4): unpack_bf16(a, Fs[2 * j], Fs[2 * j + 1], Rs[j])
            for j in range(8): a.v_fmac_f32(Ub[j], GS[gi][0], Fs[j])
            for j in range(8): a.v_mul_f32(Fs[j], GS[gi][1], Fs[j])
            for j in range(8): a.v_add_f32(Ua[j], Ua[j], Fs[j])
            for j in range(4): a.v_cvt_pk_bf16_f32(Os[j], Fs[2 * j], Fs[2 * j + 1])
        def f():
            a.v_add_u32(vwa, sWw, vww)
            part(R.sub(0, 4), F.sub(0, 8), O4.sub(0, 4), U1, U2)
            if kv:
                a.v_add_u32(vwka, sWw, vwk)
                part(R.sub(4, 4), F.sub(8, 8), O4.sub(4, 4), U1k, U2k)
        return rec(f)
    def wwrites(kv):
        def f():
            a.ds_write_b128(vwa, O4.sub(0, 4))
            if kv:
                a.s_mov_b64('exec', skm); a.ds_write_b128(vwka, O4.sub(4, 4)); a.s_mov_b64('exec', -1)
            a.s_add_u32(sWw, sWw, WSL); a.s_cmp_ge_u32(sWw, LDS_W + 3 * WSL); a.s_cselect_b32('s3', 3 * WSL, 0); a.s_sub_u32(sWw, sWw, 's3')
        return rec(f)
    fKr = [v(16, 4), v(16, 4)]
    def body(kv, kind):
        NV = 2 + (2 if kv else 1)
        NWR = 2 if kv else 1
        def frag_reads(p):
            pre = [f'v_add_u32 {aX[st]}, {sXs}, {bX[st]}' for st in range(4)] + [f'v_add_u32 {aW}, {sWs}, {bW}']
            if kind: pre.append(f'v_add_u32 {aK}, {sWs}, {bK}')
            rd = []
            for st in range(4):
                rd.append(f'ds_read_b128 {fB[p].sub(4 * st, 4)}, {aX[st]}')
                for half in range(2): rd.append(f'ds_read_b64_tr_b16 {fA[p].sub(4 * st + 2 * half, 2)}, {aW} offset:{(16 * st + 4 * half) * 128}')
                if kind:
                    for half in range(2): rd.append(f'ds_read_b64_tr_b16 {fKr[p].sub(4 * st + 2 * half, 2)}, {aK} offset:{(16 * st + 4 * half) * 64}')
            post = [f's_add_u32 {sWs}, {sWs}, {WSL}', f's_cmp_ge_u32 {sWs}, {LDS_W + 3 * WSL}', f's_cselect_b32 s3, {3 * WSL}, 0', f's_sub_u32 {sWs}, {sWs}, s3',
                    f's_add_u32 {sXs}, {sXs}, {XS}', f's_cmp_ge_u32 {sXs}, {LDS_X + NX * XS}', f's_cselect_b32 s3, {NX * XS}, 0', f's_sub_u32 {sXs}, {sXs}, s3']
            return pre, rd, post
        def mfmas(p):
            out = []
            for st in range(4):
                out.append(f'v_mfma_f32_32x32x16_bf16 {Sq}, {fA[p].sub(4 * st, 4)}, {fB[p].sub(4 * st, 4)}, {Sq}')
                if kind == 'k': out.append(f'v_mfma_f32_32x32x16_bf16 {Sk}, {fKr[p].sub(4 * st, 4)}, {fB[p].sub(4 * st, 4)}, {Sk}')
                if kind == 'v': out.append(f'v_mfma_f32_32x32x16_bf16 {Sk}, {fB[p].sub(4 * st, 4)}, {fKr[p].sub(4 * st, 4)}, {Sk}')
            return out
        emit(wgroups(0, kv)); emit(xgroups())
        for q in range(4):
            a.s_mov_b32('s3', 8192 * q); a.buffer_load_dwordx4(MP.sub(4 * q, 4), vmp, rM, 's3', mods='offen')
        a.v_lshlrev_b32(vt3, 3, 'v0'); a.s_lshl_b32('s3', smt, 7 + 3); a.buffer_load_dwordx2(RSr, vt3, rRS, 's3', mods='offen')
        emit(wgroups(1, kv))
        emit(wgroups(2, kv)); emit(xgroups())
        emit(wgroups(3, kv)); emit(xgroups())
        setup_addresses()
        for R in (Sq, U1, U2, fA[1], fB[1]) + ((U1k, U2k) if kv else ()) + ((Sk, fKr[1]) if kind else ()):
            for i in range(len(R)): a.v_mov_b32(R[i], 0)
        a(f's_waitcnt vmcnt({1 + NWR + 2 * NV})')
        for j in range(4):
            a.v_add_f32(MP[j], MP[j], MP[4 + j]); a.v_add_f32(MP[8 + j], MP[8 + j], MP[12 + j]); a.v_add_f32(MP[j], MP[j], MP[8 + j])
            round_bf16(a, MP[j])
        labg = k.lbl('noadd')
        a.s_cmp_ge_u32(swv, 4); a.s_cbranch_scc0(labg)
        for j in range(4):
            a.v_add_f32(MP[j], 1.0, MP[j]); round_bf16(a, MP[j])
        a.label(labg)
        a.ds_write_b128(vtw, MP.sub(0, 4))
        a('s_waitcnt lgkmcnt(0)\ns_barrier')
        kk = L.shr(vt, k.tid, 3); t = L.shl(vtb, kk, 2); L.add(vtb, LDS_T, t)
        a.s_mov_b32(sTo, 0); a.s_mov_b32(sWw, LDS_W); a.s_mov_b32(sXs, LDS_X); a.s_mov_b32(sWs, LDS_W)
        for x in gs_reads(0) + gs_reads(1): a(x)
        a(f's_waitcnt vmcnt({2 * NV}) lgkmcnt(0)')
        a.v_cmp_gt_u32('vcc', 128, 'v0'); a.s_and_saveexec_b64(sv, 'vcc')
        labr = k.lbl('nors'); a.s_cbranch_execz(labr)
        a.v_lshlrev_b32(vt, 3, 'v0'); a.v_add_u32(vt, LDS_RS, vt); a.ds_write_b64(vt, RSr)
        a.label(labr); a.s_mov_b64('exec', sv)
        for x in conv_lines(0, 0, kv, True) + wwrites(kv): a(x)
        emit(wgroups(4, kv)); emit(xgroups())
        for x in gs_reads(0): a(x)
        for x in conv_lines(1, 1, kv, False) + wwrites(kv): a(x)
        a('s_waitcnt lgkmcnt(0)\ns_barrier')
        k.stamp(5)
        a.s_mov_b32(sc, 4)
        lab = k.lbl('loop'); a.label(lab)
        for st in range(4):
            p = st & 1
            pre, rds, post = frag_reads(p)
            g2 = gs_reads(1 - p)
            if st == 1 and os.environ.get('LST'): k.stamp(8)
            for x in pre + [g2[0]]: a(x)
            a(f's_waitcnt vmcnt({2 * NV})')
            if st == 1 and os.environ.get('LST'): k.stamp(9)
            rds = g2[1:3] + rds; post = post + g2[3:5]
            cv = conv_lines(st + 2, p, kv, False); mf = mfmas(1 - p); gs = wgroups(st + 5, kv) + xgroups()
            nn = len(cv)
            slots = [[] for _ in range(nn + 1)]
            for j, x in enumerate(rds): slots[int(j * 0.6 * nn / len(rds))].append([x])
            for j, x in enumerate(mf): slots[min(nn, int((j + 0.5) * nn / len(mf)))].append([x])
            for j, g in enumerate(gs): slots[min(nn, int((j + 0.4) * nn / len(gs)))].append(g)
            slots[nn].append(post)
            for i in range(nn + 1):
                for g in slots[i]:
                    for y in g: a(y)
                if i < nn: a(cv[i])
            if st == 1 and os.environ.get('LST'): k.stamp(10)
            for x in wwrites(kv): a(x)
            a(f's_waitcnt lgkmcnt({NWR})')
            if st == 1 and os.environ.get('LST'): k.stamp(11)
            a('s_barrier')
            if st == 1 and os.environ.get('LST'): k.stamp(12)
        a.s_sub_u32(sc, sc, 1); a.s_cmp_lg_u32(sc, 0); a.s_cbranch_scc1(lab)
        for x in mfmas(1): a(x)
    labKV, labV1, labN, labE = k.lbl('kv'), k.lbl('v1'), k.lbl('kvn'), k.lbl('epi')
    a.s_cmp_lt_u32(snt, 2); a.s_cbranch_scc1(labKV)
    body(False, None); a.s_branch(labE)
    a.label(labKV)
    a.s_cmp_lt_u32(swv, 4); a.s_cbranch_scc1(labN)
    a.s_cmp_eq_u32(snt, 0); a.s_cbranch_scc0(labV1)
    body(True, 'k'); a.s_branch(labE)
    a.label(labV1)
    body(True, 'v'); a.s_branch(labE)
    a.label(labN)
    body(True, None)
    a.label(labE)
    k.stamp(1)
    a('s_waitcnt vmcnt(0) lgkmcnt(0)')
    a('s_barrier')
    labKu, labKd = k.lbl('ku'), k.lbl('kd')
    for R in (U1, U2):
        for j in range(8): a.v_add_f32_dpp(R[j], R[j], R[j], mods='row_ror:8 row_mask:0xf bank_mask:0xf')
    vu = vwa; t = L.shr(vt, k.tid, 4); t = L.shl(vu, t, 9); u = L.and_(vt2, k.tid, 7); L.lshl_add(vu, u, 5, t)
    L.and_(vt3, k.tid, 15)
    a.v_cmp_gt_u32('vcc', 8, vt3); a.s_and_saveexec_b64(sv, 'vcc')
    a.ds_write_b128(vu, U1.sub(0, 4)); a.ds_write_b128(vu, U1.sub(4, 4), mods='offset:16')
    a.ds_write_b128(vu, U2.sub(0, 4), mods='offset:256'); a.ds_write_b128(vu, U2.sub(4, 4), mods='offset:272')
    a.s_mov_b64('exec', sv)
    a.s_cmp_lt_u32(snt, 2); a.s_cbranch_scc0(labKu)
    for R in (U1k, U2k):
        for j in range(8): a.v_add_f32_dpp(R[j], R[j], R[j], mods='row_ror:8 row_mask:0xf bank_mask:0xf')
    a.v_cmp_gt_u32('vcc', 4, vt3); a.s_and_saveexec_b64(sv, 'vcc')
    t = L.shr(vt, k.tid, 4); t = L.shl(vu, t, 8); u = L.and_(vt2, k.tid, 3); L.lshl_add(vu, u, 5, t)
    a.ds_write_b128(vu, U1k.sub(0, 4), mods='offset:16384'); a.ds_write_b128(vu, U1k.sub(4, 4), mods='offset:16400')
    a.ds_write_b128(vu, U2k.sub(0, 4), mods='offset:16512'); a.ds_write_b128(vu, U2k.sub(4, 4), mods='offset:16528')
    a.s_mov_b64('exec', sv)
    a.label(labKu)
    a('s_waitcnt lgkmcnt(0)\ns_barrier')
    P = fA[0]; P2 = fB[0]
    labq, labk2, labd = k.lbl('uq'), k.lbl('uk'), k.lbl('ud')
    a.s_cmp_lt_u32(swv, 2); a.s_cbranch_scc1(labq)
    a.s_cmp_eq_u32(swv, 2); a.s_cbranch_scc0(labd)
    a.s_cmp_lt_u32(snt, 2); a.s_cbranch_scc0(labd)
    L.shl(vt, lane_, 2)
    for i in range(16): a.ds_read_b32(P[i], vt, mods=f'offset:{16384 + 256 * i}'); a.ds_read_b32(P2[i], vt, mods=f'offset:{16384 + 256 * (16 + i)}')
    a.v_add_u32(vt, LDS_U + 512, vt)
    a.s_branch(labk2)
    a.label(labq)
    L.shl(vt, k.tid, 2)
    for i in range(16): a.ds_read_b32(P[i], vt, mods=f'offset:{512 * i}'); a.ds_read_b32(P2[i], vt, mods=f'offset:{512 * (16 + i)}')
    a.v_add_u32(vt, LDS_U, vt)
    a.label(labk2)
    a('s_waitcnt lgkmcnt(0)')
    for i in range(16): a.v_add_f32(P[i], P[i], P2[i])
    for n in (8, 4, 2, 1):
        for i in range(n): a.v_add_f32(P[i], P[i], P[i + n])
    a.ds_write_b32(vt, P[0])
    a.label(labd)
    a('s_waitcnt lgkmcnt(0)\ns_barrier')
    k.stamp(2)
    UA = fA[0]; UB = fA[1]; RSq = F.sub(0, 2)
    r = L.and_(vt2, lane_, 31); row = L.lshl_add(vt, w4_, 5, r); t = L.shl(vt, row, 3); L.add(vt, LDS_RS, t)
    a.ds_read_b64(RSq, vt)
    hh = L.shr(vt, wave_, 2); t = L.shl(vt, hh, 7); h = L.shr(vt2, lane_, 5); t = L.lshl_add(vt, h, 4, t); L.add(vt, LDS_U, t)
    for i in range(4):
        a.ds_read_b128(UA.sub(4 * i, 4), vt, mods=f'offset:{32 * i}'); a.ds_read_b128(UB.sub(4 * i, 4), vt, mods=f'offset:{256 + 32 * i}')
    a('s_waitcnt lgkmcnt(0)')
    Pq = O4
    for i in range(16):
        a.v_fma_f32(UA[i], RSq[1], UA[i], UB[i]); a.v_fma_f32(Sq[i], RSq[0], Sq[i], UA[i]); a.v_mul_f32(Sq[i], fhex(SCALE), Sq[i])
    for i in range(8): a.v_cvt_pk_bf16_f32(Pq[i], Sq[2 * i], Sq[2 * i + 1])
    rQ = k.srd(pws, WS_QF, 256 * 8 * 2048, dst=rX)
    sq = s(); a.s_lshl_b32(sq, smt, 4); a.s_add_u32(sq, sq, snt); a.s_lshl_b32(sq, sq, 3); a.s_add_u32(sq, sq, swv); a.s_lshl_b32(sq, sq, 11)
    vl = vt3; L.shl(vl, lane_, 4)
    a.buffer_store_dwordx4(Pq.sub(0, 4), vl, rQ, sq, mods=f'offen {ST}'); a.buffer_store_dwordx4(Pq.sub(4, 4), vl, rQ, sq, mods=f'offen offset:1024 {ST}')
    a.s_cmp_lt_u32(snt, 2); a.s_cbranch_scc0(f'L_{k.name}_end')
    a.s_cmp_ge_u32(swv, 4); a.s_cbranch_scc0(f'L_{k.name}_end')
    labVv, labKV2 = k.lbl('ev'), k.lbl('ekv')
    a.s_cmp_eq_u32(snt, 0); a.s_cbranch_scc0(labVv)
    h = L.shr(vt2, lane_, 5); t = L.shl(vt, h, 4); L.add(vt, LDS_U + 512, t)
    for i in range(4):
        a.ds_read_b128(UA.sub(4 * i, 4), vt, mods=f'offset:{32 * i}'); a.ds_read_b128(UB.sub(4 * i, 4), vt, mods=f'offset:{128 + 32 * i}')
    a('s_waitcnt lgkmcnt(0)')
    for i in range(16):
        a.v_fma_f32(UA[i], RSq[1], UA[i], UB[i]); a.v_fma_f32(Sk[i], RSq[0], Sk[i], UA[i])
    a.s_branch(labKV2)
    a.label(labVv)
    U2l = F.sub(2, 2); RK = fB[0]; RK2 = fB[1]
    d_ = L.and_(vt2, lane_, 31); t = L.shl(vt, d_, 2); L.add(vt, LDS_U + 512, t)
    a.ds_read_b32(U2l[0], vt); a.ds_read_b32(U2l[1], vt, mods='offset:128')
    h = L.shr(vt2, lane_, 5); t = L.shl(vt, w4_, 8); t = L.lshl_add(vt, h, 5, t); L.add(vt, LDS_RS, t)
    for i in range(4):
        dst = (RK if i < 2 else RK2).sub(8 * (i & 1), 8)
        a.ds_read_b128(dst.sub(0, 4), vt, mods=f'offset:{64 * i}'); a.ds_read_b128(dst.sub(4, 4), vt, mods=f'offset:{64 * i + 16}')
    a('s_waitcnt lgkmcnt(0)')
    for i in range(4):
        src = (RK if i < 2 else RK2).sub(8 * (i & 1), 8)
        for j in range(4):
            rs_, mr_ = src[2 * j], src[2 * j + 1]
            a.v_fma_f32(mr_, mr_, U2l[0], U2l[1]); a.v_fma_f32(Sk[4 * i + j], rs_, Sk[4 * i + j], mr_)
    a.label(labKV2)
    PK = UB.sub(0, 8)
    for i in range(8): a.v_cvt_pk_bf16_f32(PK[i], Sk[2 * i], Sk[2 * i + 1])
    sT = s(); a.s_lshl_b32(sT, smt, 2); a.s_add_u32(sT, sT, sw4)
    so = s(); a.s_lshl_b32(so, sT, 11)
    a.s_lshl_b32('s3', snt, 17); a.s_add_u32(so, so, 's3')
    rKV = k.srd(pws, WS_KF, 262144, dst=rWq)
    a.buffer_store_dwordx4(PK.sub(0, 4), vl, rKV, so, mods=f'offen {ST}'); a.buffer_store_dwordx4(PK.sub(4, 4), vl, rKV, so, mods=f'offen offset:1024 {ST}')
    a.s_cmp_eq_u32(snt, 0); a.s_cbranch_scc0(f'L_{k.name}_end')
    q2 = UA.sub(0, 2); lo, hi = UA[2], UA[3]
    for i in range(8):
        unpack_bf16(a, lo, hi, PK[i])
        if i == 0: a.v_mul_f32(q2[0], lo, lo)
        else: a.v_fmac_f32(q2[0], lo, lo)
        a.v_fmac_f32(q2[0], hi, hi)
    a.v_mov_b32(q2[1], q2[0]); a.v_permlane32_swap_b32(q2[0], q2[1]); a.v_add_f32(q2[0], q2[0], q2[1])
    for m in ('row_ror:1', 'row_ror:2', 'row_ror:4', 'row_ror:8'): a.v_max_f32_dpp(q2[0], q2[0], q2[0], mods=f'{m} row_mask:0xf bank_mask:0xf')
    a.v_mov_b32(q2[1], q2[0]); a.v_permlane16_swap_b32(q2[0], q2[1]); a.v_max_f32(q2[0], q2[0], q2[1])
    rKM = k.srd(pws, WS_KM, 256, dst=rM)
    a.s_lshl_b32(sT, sT, 2)
    a.v_mov_b32(lo, 0)
    a.s_mov_b64('exec', 1)
    a.buffer_store_dword(q2[0], lo, rKM, sT, mods='offen')
    a.s_mov_b64('exec', -1)
    k.stamp(3)
    return k
```
